```python
import torch

def _softmax(x, axis=-1):
    return torch.softmax(x, dim=axis)
def _gelu(x):
    return torch.nn.functional.gelu(x, approximate="tanh")
def _silu(x):
    return torch.nn.functional.silu(x)
def _sigmoid(x):
    return torch.sigmoid(x)
def _layernorm(x, axis=-1, eps=1e-5):
    m = x.mean(dim=axis, keepdim=True)
    v = x.var(dim=axis, keepdim=True, unbiased=False)
    return (x - m) / torch.sqrt(v + eps)
def _scatter_add(tgt, idx, src, axis=0):
    return tgt.clone().index_add_(axis, idx, src)
def _segment_sum(src, seg, n):
    out = torch.zeros((n,) + src.shape[1:], dtype=src.dtype)
    return out.index_add_(0, seg, src)
def _pad(x, pw):
    flat = tuple(v for pair in reversed(pw) for v in pair)
    return torch.nn.functional.pad(x, flat)

kernel_name = 'sequential_preLN__grouped_kv_mqa__mixer_token_mlp__prompt'

def setup_inputs():

    _w = (lambda a: (lambda t: t.to(torch.bfloat16) if t.is_floating_point() else t)(torch.as_tensor(a)))
    def _A_setup():
        B, S, D, H = 1, 2048, 448, 16
        Dh = D // H
        return {
            "x": _w((lambda *s: torch.randn(*s, dtype=torch.bfloat16) * 0.05)(B, S, D)),
            "wq": _w((lambda *s: torch.randn(*s, dtype=torch.bfloat16) * 0.05)(D, H * Dh)),
            "wk": _w((lambda *s: torch.randn(*s, dtype=torch.bfloat16) * 0.05)(D, Dh)),
            "wv": _w((lambda *s: torch.randn(*s, dtype=torch.bfloat16) * 0.05)(D, Dh)),
            "wo": _w((lambda *s: torch.randn(*s, dtype=torch.bfloat16) * 0.05)(H * Dh, D)),
        }
    _A_in = _A_setup()

    def _B_setup():
        B, S, D, F = 1, 2048, 448, 1792
        return {
            "x": _w((lambda *s: torch.randn(*s, dtype=torch.bfloat16) * 0.05)(B, S, D)),
            "w1": _w((lambda *s: torch.randn(*s, dtype=torch.bfloat16) * 0.8)(S, F) * (S ** -0.5)),
            "b1": _w((lambda *s: torch.randn(*s, dtype=torch.bfloat16) * 12.8)(F) * 0.02),
            "w2": _w((lambda *s: torch.randn(*s, dtype=torch.bfloat16) * 0.2)(F, S) * (F ** -0.5)),
            "b2": _w((lambda *s: torch.randn(*s, dtype=torch.bfloat16) * 3.2)(S) * 0.02),
        }
    _B_in = _B_setup()

    return {
        "A_x": _A_in["x"],
        "A_wq": _A_in["wq"],
        "A_wk": _A_in["wk"],
        "A_wv": _A_in["wv"],
        "A_wo": _A_in["wo"],
        "B_x": _B_in["x"],
        "B_w1": _B_in["w1"],
        "B_b1": _B_in["b1"],
        "B_w2": _B_in["w2"],
        "B_b2": _B_in["b2"],
    }

def reference(A_x, A_wq, A_wk, A_wv, A_wo, B_x, B_w1, B_b1, B_w2, B_b2):
    def _A_ref(x, wq, wk, wv, wo):
        B, S, D = x.shape
        H = 16
        Dh = D // H
        q = (lambda x, *d: x.permute(*d))((x @ wq).reshape(B, S, H, Dh), 0, 2, 1, 3)
        k = x @ wk
        v = x @ wv
        scores = torch.einsum("bhqd,bkd->bhqk", q, k) * (Dh ** -0.5)
        p = _softmax(scores, axis=-1)
        o = torch.einsum("bhqk,bkd->bhqd", p, v)
        return (lambda x, *d: x.permute(*d))(o, 0, 2, 1, 3).reshape(B, S, H * Dh) @ wo

    def _B_ref(x, w1, b1, w2, b2):
        B, S, D = x.shape
        h = _layernorm(x, axis=-1)
        u = torch.einsum("bsd,sf->bdf", h, w1) + b1
        u = _gelu(u)
        y = torch.einsum("bdf,fs->bds", u, w2) + b2
        return (lambda x, *d: x.permute(*d))(y, 0, 2, 1)

    x = A_x
    h = x + _A_ref(_layernorm(x, axis=-1), A_wq, A_wk, A_wv, A_wo)
    h2 = h + _B_ref(_layernorm(h, axis=-1), B_w1, B_b1, B_w2, B_b2)
    return h2
```

```python
import sys

NAME = "sequential_preLN__grouped_kv_mqa__mixer_token_mlp__prompt"

QF_OFF = 0x000000
KV_OFF = 0x200000
OF_OFF = 0x240000
H_OFF = 0x440000
HH_OFF = 0x600000
UF_OFF = 0x800000
WS_SIZE = 0x1000000

LOG2E = 1.4426950408889634
QSCALE = LOG2E / (28.0 ** 0.5)


def f2u(x):
    import struct
    return struct.unpack("<I", struct.pack("<f", x))[0]


class E:
    def __init__(self):
        self.lines = []
        self.vm = []

    def __call__(self, s):
        self.lines.append("    " + s)

    def label(self, s):
        self.lines.append(s + ":")

    def c(self, s):
        self.lines.append("    ; " + s)

    def vmop(self, s, tag):
        self(s)
        self.vm.append(tag)

    def vmwait(self, tags):
        if isinstance(tags, str):
            tags = [tags]
        last = -1
        for i, t in enumerate(self.vm):
            if t in tags:
                last = i
        if last < 0:
            return
        n = len(self.vm) - 1 - last
        assert n <= 63, n
        self(f"s_waitcnt vmcnt({n})")
        self.vm = self.vm[last + 1:]

    def text(self):
        return "\n".join(self.lines) + "\n"


def srd(e, s, lo, hi, size):
    e(f"s_mov_b32 s{s}, s{lo}")
    e(f"s_and_b32 s{s+1}, s{hi}, 0xffff")
    e(f"s_mov_b32 s{s+2}, {size}")
    e(f"s_mov_b32 s{s+3}, 0x00020000")


def vr(a, n):
    return f"v[{a}:{a+n-1}]"


def header(e, name):
    e.lines.append(f".globl {name}")
    e.lines.append(".p2align 8")
    e.lines.append(f".type {name},@function")
    e.lines.append(f"{name}:")


def desc(name, vgpr, sgpr=102):
    acc = (vgpr + 3) // 4 * 4
    return f""".section .rodata,"a"
.p2align 6
.amdhsa_kernel {name}
  .amdhsa_next_free_vgpr {vgpr}
  .amdhsa_next_free_sgpr {sgpr}
  .amdhsa_accum_offset {acc}
  .amdhsa_group_segment_fixed_size 0
  .amdhsa_kernarg_size 104
  .amdhsa_user_sgpr_count 2
  .amdhsa_user_sgpr_kernarg_segment_ptr 1
  .amdhsa_system_sgpr_workgroup_id_x 1
.end_amdhsa_kernel
.text
"""


MFMA = "v_mfma_f32_32x32x16_bf16"


def k1():
    e = E()
    header(e, "k1_kernel")
    e("s_cmp_ge_u32 s2, 192")
    e("s_cbranch_scc1 K1_END")
    e("s_load_dwordx4 s[4:7], s[0:1], 0")
    e("s_load_dwordx4 s[8:11], s[0:1], 16")
    e("s_load_dwordx2 s[12:13], s[0:1], 96")
    e("v_lshrrev_b32 v1, 6, v0")
    e("v_and_b32 v2, 63, v0")
    e("v_readfirstlane_b32 s30, v1")
    e("s_mov_b32 s33, 0x2AAAAAAB")
    e("s_mul_hi_u32 s29, s2, s33")
    e("s_mul_i32 s33, s29, 6")
    e("s_sub_u32 s28, s2, s33")
    e("s_lshr_b32 s31, s30, 1")
    e("s_mul_i32 s32, s28, 3")
    e("s_add_u32 s32, s32, s31")
    e("s_waitcnt lgkmcnt(0)")
    srd(e, 16, 4, 5, 2048 * 896)
    srd(e, 24, 12, 13, WS_SIZE)
    e("s_cmp_lt_u32 s32, 16")
    e("s_cselect_b32 s20, s6, s8")
    e("s_cselect_b32 s21, s7, s9")
    e("s_mov_b32 s36, 896")
    e("s_cselect_b32 s34, s36, 56")
    e("s_mov_b32 s36, 401408")
    e("s_cselect_b32 s22, s36, 25088")
    e("s_mul_i32 s35, s32, 56")
    e("s_cselect_b32 s35, s35, 0")
    e("s_cmp_eq_u32 s32, 17")
    e("s_cselect_b32 s20, s10, s20")
    e("s_cselect_b32 s21, s11, s21")
    e("s_and_b32 s21, s21, 0xffff")
    e("s_mov_b32 s23, 0x00020000")
    e("v_lshrrev_b32 v3, 3, v2")
    e("s_and_b32 s36, s30, 1")
    e("s_mul_i32 s36, s36, 224")
    e("v_add_u32 v3, s36, v3")
    e("v_mul_lo_u32 v4, v3, s34")
    e("v_and_b32 v5, 7, v2")
    e("v_lshl_add_u32 v4, v5, 3, v4")
    e("v_add_u32 v4, s35, v4")
    e("v_mov_b32 v6, 0x80000000")
    e("v_cmp_eq_u32 vcc, 7, v5")
    e("s_mul_i32 s36, s31, 28672")
    e("v_lshlrev_b32 v7, 6, v3")
    e("v_cndmask_b32 v4, v4, v6, vcc")
    e("v_lshl_add_u32 v7, v5, 3, v7")
    e("v_add_u32 v7, s36, v7")
    e("s_lshl_b32 s37, s34, 3")
    e("s_mov_b32 s38, 0")
    for it in range(28):
        e.vmop(f"buffer_load_dwordx2 {vr(64+2*it,2)}, v4, s[20:23], s38 offen", "W")
        e("s_add_u32 s38, s38, s37")
    e("s_cmp_ge_u32 s30, 3")
    e("s_cselect_b32 s39, 1, 0")
    e("s_mul_i32 s40, s39, 3")
    e("s_sub_u32 s40, s30, s40")
    e("s_lshl_b32 s41, s29, 1")
    e("s_add_u32 s41, s41, s39")
    e("s_lshl_b32 s42, s41, 5")
    e("v_and_b32 v8, 31, v2")
    e("v_add_u32 v8, s42, v8")
    e("s_movk_i32 s43, 896")
    e("v_mul_lo_u32 v8, v8, s43")
    e("v_lshrrev_b32 v9, 5, v2")
    e("v_lshl_add_u32 v8, v9, 4, v8")
    for kk in range(28):
        e.vmop(f"buffer_load_dwordx4 {vr(128+4*kk,4)}, v8, s[16:19], 0 offen offset:{kk*32}", "X")
    e("v_lshrrev_b32 v10, 4, v2")
    e("v_and_b32 v11, 15, v2")
    e("v_lshrrev_b32 v12, 1, v10")
    e("v_lshlrev_b32 v12, 3, v12")
    e("v_lshrrev_b32 v13, 2, v11")
    e("v_add_u32 v12, v12, v13")
    e("v_lshlrev_b32 v12, 6, v12")
    e("v_and_b32 v13, 1, v10")
    e("v_lshl_add_u32 v12, v13, 5, v12")
    e("v_and_b32 v13, 3, v11")
    e("v_lshl_add_u32 v12, v13, 3, v12")
    e("s_mul_i32 s44, s40, 28672")
    e("v_add_u32 v12, s44, v12")
    for r in range(16, 48):
        e(f"v_mov_b32 v{r}, 0")
    for r in range(48, 52):
        e(f"v_mov_b32 v{r}, 0x3f803f80")
    e("v_mov_b32 v52, 0")
    e("v_mov_b32 v53, 0")
    e.vmwait("W")
    for it in range(28):
        e(f"ds_write_b64 v7, {vr(64+2*it,2)} offset:{it*512}")
    e("s_waitcnt lgkmcnt(0)")
    e("s_barrier")
    e.vmwait("X")
    e("s_mul_i32 s45, s28, 3")
    e("s_add_u32 s45, s45, s40")
    e("s_cmp_eq_u32 s45, 17")
    e("s_cbranch_scc1 K1_V")

    def mainloop(isv):
        for b in range(2):
            for i in range(14):
                kk = b * 14 + i
                e(f"ds_read_b64_tr_b16 {vr(64+4*i,2)}, v12 offset:{kk*1024}")
                e(f"ds_read_b64_tr_b16 {vr(66+4*i,2)}, v12 offset:{kk*1024+256}")
            e("s_waitcnt lgkmcnt(0)")
            for i in range(14):
                kk = b * 14 + i
                w = vr(64 + 4 * i, 4)
                x = vr(128 + 4 * kk, 4)
                if isv:
                    e(f"{MFMA} v[32:47], {x}, {w}, v[32:47]")
                    e(f"{MFMA} v[16:31], v[48:51], {w}, v[16:31]")
                else:
                    e(f"{MFMA} v[32:47], {w}, {x}, v[32:47]")
                    e(f"{MFMA} v[16:31], {w}, v[48:51], v[16:31]")
                for j in range(4):
                    e(f"v_dot2_f32_bf16 v52, v{128+4*kk+j}, v48, v52")
                    e(f"v_dot2_f32_bf16 v53, v{128+4*kk+j}, v{128+4*kk+j}, v53")
        e("v_mov_b32 v54, v52")
        e("v_mov_b32 v55, v53")
        e("s_nop 1")
        e("v_permlane32_swap_b32 v52, v54")
        e("v_permlane32_swap_b32 v53, v55")
        e("v_add_f32 v52, v52, v54")
        e("v_add_f32 v53, v53, v55")
        e(f"v_mul_f32 v52, {f2u(1.0/448):#x}, v52")
        e(f"v_mul_f32 v53, {f2u(1.0/448):#x}, v53")
        e("v_fma_f32 v53, -v52, v52, v53")
        e(f"v_add_f32 v53, {f2u(1e-5):#x}, v53")
        e("v_rsq_f32 v53, v53")
        e("s_nop 7")
        e("s_nop 7")

    mainloop(False)
    e("s_cmp_lt_u32 s45, 16")
    e(f"s_cselect_b32 s46, {f2u(QSCALE):#x}, 1.0")
    e("v_mul_f32 v53, s46, v53")
    for r in range(16):
        e(f"v_fma_f32 v{32+r}, -v52, v{16+r}, v{32+r}")
    for r in range(16):
        e(f"v_mul_f32 v{32+r}, v53, v{32+r}")
    for j in range(8):
        e(f"v_cvt_pk_bf16_f32 v{64+j}, v{32+2*j}, v{33+2*j}")
    e("s_lshl_b32 s47, s45, 6")
    e("s_add_u32 s47, s47, s41")
    e("s_lshl_b32 s47, s47, 11")
    e(f"s_add_u32 s47, s47, {QF_OFF}")
    e("s_lshl_b32 s48, s41, 12")
    e(f"s_add_u32 s48, s48, {KV_OFF}")
    e("s_cmp_lt_u32 s45, 16")
    e("s_cselect_b32 s47, s47, s48")
    e("v_lshlrev_b32 v56, 4, v2")
    e("buffer_store_dwordx4 v[64:67], v56, s[24:27], s47 offen")
    e("buffer_store_dwordx4 v[68:71], v56, s[24:27], s47 offen offset:1024")
    e("s_endpgm")
    e.label("K1_V")
    mainloop(True)
    e("s_lshl_b32 s46, s30, 8")
    e("s_add_u32 s46, s46, 86016")
    e("v_and_b32 v56, 31, v2")
    e("v_lshlrev_b32 v57, 2, v56")
    e("v_add_u32 v57, s46, v57")
    e("ds_write_b32 v57, v52")
    e("ds_write_b32 v57, v53 offset:128")
    e("v_lshlrev_b32 v58, 4, v9")
    e("v_add_u32 v58, s46, v58")
    e("s_waitcnt lgkmcnt(0)")
    for q in range(4):
        e(f"ds_read_b128 {vr(64+4*q,4)}, v58 offset:{q*32}")
        e(f"ds_read_b128 {vr(80+4*q,4)}, v58 offset:{128+q*32}")
    e("s_waitcnt lgkmcnt(0)")
    for r in range(16):
        e(f"v_fma_f32 v{32+r}, -v{64+r}, v{16+r}, v{32+r}")
    for r in range(16):
        e(f"v_mul_f32 v{32+r}, v{80+r}, v{32+r}")
    e("v_cmp_eq_u32 vcc, 28, v56")
    e("v_mov_b32 v59, 1.0")
    e("s_nop 1")
    for r in range(16):
        e(f"v_cndmask_b32 v{32+r}, v{32+r}, v59, vcc")
    for j in range(8):
        e(f"v_cvt_pk_bf16_f32 v{96+j}, v{32+2*j}, v{33+2*j}")
    e("s_lshl_b32 s48, s41, 12")
    e(f"s_add_u32 s48, s48, {KV_OFF + 2048}")
    e("v_lshlrev_b32 v56, 4, v2")
    e("buffer_store_dwordx4 v[96:99], v56, s[24:27], s48 offen")
    e("buffer_store_dwordx4 v[100:103], v56, s[24:27], s48 offen offset:1024")
    e.label("K1_END")
    e("s_endpgm")
    return e.text(), desc("k1_kernel", 240), "; @launch kernel=k1_kernel grid=(192,1,1) block=(384,1,1) lds=87552"


def k2():
    e = E()
    header(e, "k2_kernel")
    T_RESC = 8.0
    Q0, Q1 = 16, 20
    NEGM = 24
    S = [40, 56]
    O = 72
    P = 88
    KF = [96, 104]
    VF = [112, 120]
    e("s_cmp_ge_u32 s2, 256")
    e("s_cbranch_scc1 K2_END")
    e("s_load_dwordx2 s[4:5], s[0:1], 96")
    e("v_lshrrev_b32 v1, 6, v0")
    e("v_and_b32 v2, 63, v0")
    e("v_readfirstlane_b32 s30, v1")
    e("s_lshr_b32 s31, s2, 4")
    e("s_and_b32 s32, s2, 15")
    e("s_lshl_b32 s33, s32, 2")
    e("s_add_u32 s33, s33, s30")
    e("v_lshlrev_b32 v1, 4, v2")
    e("s_waitcnt lgkmcnt(0)")
    srd(e, 8, 4, 5, WS_SIZE)
    e("s_lshl_b32 s34, s31, 6")
    e("s_add_u32 s34, s34, s33")
    e("s_lshl_b32 s34, s34, 11")
    e(f"s_add_u32 s34, s34, {QF_OFF}")
    e(f"buffer_load_dwordx4 {vr(Q0,4)}, v1, s[8:11], s34 offen")
    e(f"buffer_load_dwordx4 {vr(Q1,4)}, v1, s[8:11], s34 offen offset:1024")
    e("s_lshl_b32 s35, s30, 13")

    def dma_chunk(soff, m0reg):
        e(f"s_mov_b32 m0, s{m0reg}")
        e("s_nop 0")
        for i in range(4):
            e(f"buffer_load_dwordx4 v1, s[8:11], s{soff} offen offset:{i*1024} lds")
        e(f"s_add_u32 s{soff}, s{soff}, 4096")
        e(f"s_add_u32 s{m0reg}, s{m0reg}, 4096")
        e(f"s_mov_b32 m0, s{m0reg}")
        e("s_nop 0")
        for i in range(4):
            e(f"buffer_load_dwordx4 v1, s[8:11], s{soff} offen offset:{i*1024} lds")

    for c in range(3):
        e(f"s_add_u32 s40, s35, {KV_OFF + c*32768}")
        e(f"s_add_u32 s41, s35, {c*32768}")
        dma_chunk(40, 41)
    e(f"s_add_u32 s42, s35, {KV_OFF + 3*32768}")
    e(f"s_add_u32 s43, s35, {3*32768}")
    for r in range(16):
        e(f"v_mov_b32 v{O+r}, 0")
        e(f"v_mov_b32 v{NEGM+r}, 0")
    e("v_mov_b32 v2, v1")
    e("v_add_u32 v3, 32768, v1")
    e("s_waitcnt vmcnt(16)")
    e("s_barrier")
    e(f"ds_read_b128 {vr(KF[0],4)}, v2 offset:0")
    e(f"ds_read_b128 {vr(KF[0]+4,4)}, v2 offset:1024")
    e(f"ds_read_b128 {vr(KF[1],4)}, v2 offset:4096")
    e(f"ds_read_b128 {vr(KF[1]+4,4)}, v2 offset:5120")
    e(f"ds_read_b128 {vr(VF[0],4)}, v2 offset:2048")
    e(f"ds_read_b128 {vr(VF[0]+4,4)}, v2 offset:3072")
    e("s_waitcnt lgkmcnt(0)")
    e(f"{MFMA} {vr(S[0],16)}, {vr(KF[0],4)}, {vr(Q0,4)}, 0")
    e(f"{MFMA} {vr(S[0],16)}, {vr(KF[0]+4,4)}, {vr(Q1,4)}, {vr(S[0],16)}")
    e("s_nop 7")
    e("s_nop 7")

    def maxtree(sb):
        e(f"v_max3_f32 v4, v{sb}, v{sb+1}, v{sb+2}")
        e(f"v_max3_f32 v5, v{sb+3}, v{sb+4}, v{sb+5}")
        e(f"v_max3_f32 v6, v{sb+6}, v{sb+7}, v{sb+8}")
        e(f"v_max3_f32 v7, v{sb+9}, v{sb+10}, v{sb+11}")
        e(f"v_max3_f32 v4, v4, v{sb+12}, v{sb+13}")
        e(f"v_max3_f32 v5, v5, v{sb+14}, v{sb+15}")
        e("v_max3_f32 v4, v4, v6, v7")
        e("v_max_f32 v4, v4, v5")

    def rescale(sb, first):
        e("s_nop 7")
        e("s_nop 7")
        e("v_mov_b32 v5, v4")
        e("s_nop 1")
        e("v_permlane32_swap_b32 v4, v5")
        e("v_max_f32 v4, v4, v5")
        if not first:
            e("v_max_f32 v4, 0, v4")
            e("v_sub_f32 v5, 0, v4")
            e("v_exp_f32 v5, v5")
            e("s_nop 0")
            for r in range(16):
                e(f"v_mul_f32 v{O+r}, v5, v{O+r}")
        for r in range(16):
            e(f"v_sub_f32 v{sb+r}, v{sb+r}, v4")
        for r in range(16):
            e(f"v_sub_f32 v{NEGM+r}, v{NEGM+r}, v4")

    maxtree(S[0])
    rescale(S[0], True)
    e("s_mov_b32 s44, 0")
    e(f"s_mov_b32 s45, {f2u(T_RESC):#x}")

    rare = []

    def tile(i, uid, last_chunk):
        p = i & 1
        sc, sn = S[p], S[1 - p]
        has_nxt = not (last_chunk and i == 7)
        has_k2 = not (last_chunk and i >= 6)
        if i == 6 and not last_chunk:
            e("s_cmp_ge_u32 s44, 6")
            e(f"s_cbranch_scc1 K2_W0_{uid}")
            e("s_waitcnt vmcnt(8)")
            e(f"s_branch K2_W1_{uid}")
            e.label(f"K2_W0_{uid}")
            e("s_waitcnt vmcnt(0)")
            e.label(f"K2_W1_{uid}")
            e("s_barrier")
            e("s_cmp_ge_u32 s44, 5")
            e(f"s_cbranch_scc1 K2_ND_{uid}")
            dma_chunk(42, 43)
            e(f"s_add_u32 s42, s42, {32768-4096}")
            e(f"s_add_u32 s43, s43, {32768-4096}")
            e("s_and_b32 s43, s43, 0x1ffff")
            e.label(f"K2_ND_{uid}")
        if has_nxt:
            e(f"{MFMA} {vr(sn,16)}, {vr(KF[1-p],4)}, {vr(Q0,4)}, {vr(NEGM,16)}")
            e(f"{MFMA} {vr(sn,16)}, {vr(KF[1-p]+4,4)}, {vr(Q1,4)}, {vr(sn,16)}")
        if has_k2:
            t2 = i + 2
            a, o = ("v2", t2 * 4096) if t2 < 8 else ("v3", (t2 - 8) * 4096)
            e(f"ds_read_b128 {vr(KF[p],4)}, {a} offset:{o}")
            e(f"ds_read_b128 {vr(KF[p]+4,4)}, {a} offset:{o+1024}")
        if has_nxt:
            t1 = i + 1
            a, o = ("v2", t1 * 4096) if t1 < 8 else ("v3", (t1 - 8) * 4096)
            e(f"ds_read_b128 {vr(VF[1-p],4)}, {a} offset:{o+2048}")
            e(f"ds_read_b128 {vr(VF[1-p]+4,4)}, {a} offset:{o+3072}")
        for r in range(8):
            e(f"v_exp_f32 v{sc+r}, v{sc+r}")
        e(f"v_exp_f32 v{sc+8}, v{sc+8}")
        for j in range(4):
            e(f"v_cvt_pk_bf16_f32 v{P+j}, v{sc+2*j}, v{sc+2*j+1}")
        e(f"v_exp_f32 v{sc+9}, v{sc+9}")
        e(f"v_exp_f32 v{sc+10}, v{sc+10}")
        e(f"{MFMA} {vr(O,16)}, {vr(VF[p],4)}, {vr(P,4)}, {vr(O,16)}")
        for r in range(11, 16):
            e(f"v_exp_f32 v{sc+r}, v{sc+r}")
        e("s_nop 0")
        for j in range(4, 8):
            e(f"v_cvt_pk_bf16_f32 v{P+j}, v{sc+2*j}, v{sc+2*j+1}")
        if has_nxt:
            e(f"v_max3_f32 v4, v{sn}, v{sn+1}, v{sn+2}")
            e(f"v_max3_f32 v5, v{sn+3}, v{sn+4}, v{sn+5}")
        else:
            e("s_nop 1")
        e(f"{MFMA} {vr(O,16)}, {vr(VF[p]+4,4)}, {vr(P+4,4)}, {vr(O,16)}")
        if has_nxt:
            e(f"v_max3_f32 v6, v{sn+6}, v{sn+7}, v{sn+8}")
            e(f"v_max3_f32 v7, v{sn+9}, v{sn+10}, v{sn+11}")
            e(f"v_max3_f32 v4, v4, v{sn+12}, v{sn+13}")
            e(f"v_max3_f32 v5, v5, v{sn+14}, v{sn+15}")
            e("v_max3_f32 v4, v4, v6, v7")
            e("v_max_f32 v4, v4, v5")
            e("v_cmp_lt_f32 vcc, s45, v4")
            e("s_waitcnt lgkmcnt(0)")
            e(f"s_cbranch_vccnz K2_R_{uid}")
            e.label(f"K2_B_{uid}")
            rare.append((f"K2_R_{uid}", f"K2_B_{uid}", sn))

    e.label("K2_LOOP")
    for i in range(8):
        tile(i, f"a{i}", False)
    e("v_mov_b32 v2, v3")
    e("v_add_u32 v3, 32768, v3")
    e("v_and_b32 v3, 0x1ffff, v3")
    e("s_add_u32 s44, s44, 1")
    e("s_cmp_lt_u32 s44, 7")
    e("s_cbranch_scc1 K2_LOOP")
    for i in range(8):
        tile(i, f"b{i}", True)
    e("s_nop 7")
    e("s_nop 7")
    e(f"v_mov_b32 v4, v{O+12}")
    e(f"v_mov_b32 v5, v{O+12}")
    e("s_nop 1")
    e("v_permlane32_swap_b32 v4, v5")
    e("v_rcp_f32 v5, v5")
    e("v_lshrrev_b32 v6, 9, v1")
    e("v_cmp_eq_u32 vcc, 1, v6")
    for r in range(16):
        e(f"v_mul_f32 v{O+r}, v5, v{O+r}")
    e("v_mov_b32 v7, 0")
    for r in range(12, 16):
        e(f"v_cndmask_b32 v{O+r}, v{O+r}, v7, vcc")
    for j in range(8):
        e(f"v_cvt_pk_bf16_f32 v{P+j}, v{O+2*j}, v{O+2*j+1}")
    e("s_lshl_b32 s34, s33, 4")
    e("s_add_u32 s34, s34, s31")
    e("s_lshl_b32 s34, s34, 11")
    e(f"s_add_u32 s34, s34, {OF_OFF}")
    e(f"buffer_store_dwordx4 {vr(P,4)}, v1, s[8:11], s34 offen")
    e(f"buffer_store_dwordx4 {vr(P+4,4)}, v1, s[8:11], s34 offen offset:1024")
    e("s_endpgm")
    for (rl, bl, sn) in rare:
        e.label(rl)
        rescale(sn, False)
        e(f"s_branch {bl}")
    e.label("K2_END")
    e("s_endpgm")
    return e.text(), desc("k2_kernel", 128), "; @launch kernel=k2_kernel grid=(256,1,1) block=(256,1,1) lds=131072"


def tr_addr(e, vl, va0, va1, vt0, vt1, natural):
    e(f"v_lshrrev_b32 v{vt0}, 5, v{vl}")
    e(f"v_lshlrev_b32 v{vt0}, {3 if natural else 2}, v{vt0}")
    e(f"v_bfe_u32 v{vt1}, v{vl}, 2, 2")
    e(f"v_add_u32 v{vt0}, v{vt0}, v{vt1}")
    e(f"v_lshlrev_b32 v{va0}, 7, v{vt0}")
    e(f"v_bfe_u32 v{vt1}, v{vl}, 4, 1")
    e(f"v_lshl_add_u32 v{va0}, v{vt1}, 5, v{va0}")
    e(f"v_and_b32 v{vt1}, 3, v{vl}")
    e(f"v_lshl_add_u32 v{va0}, v{vt1}, 3, v{va0}")
    e(f"v_bfe_u32 v{vt1}, v{vl}, 3, 1")
    e(f"v_lshlrev_b32 v{vt1}, 6, v{vt1}")
    e(f"v_xor_b32 v{va0}, v{va0}, v{vt1}")
    e(f"v_xor_b32 v{va1}, 64, v{va0}")


def dma_voff(e, vl, vd, vt, pitch_sreg):
    e(f"v_lshrrev_b32 v{vt}, 3, v{vl}")
    e(f"v_mul_lo_u32 v{vd}, v{vt}, s{pitch_sreg}")
    e(f"v_bfe_u32 v{vt}, v{vl}, 4, 1")
    e(f"v_lshlrev_b32 v{vt}, 2, v{vt}")
    e(f"v_xor_b32 v{vt}, v{vt}, v{vl}")
    e(f"v_and_b32 v{vt}, 7, v{vt}")
    e(f"v_lshl_add_u32 v{vd}, v{vt}, 4, v{vd}")


def k3():
    e = E()
    header(e, "k3_kernel")
    RING = 8
    RBASE = 32768
    STAT = 147456
    e("s_cmp_ge_u32 s2, 64")
    e("s_cbranch_scc1 K3_END")
    e("s_load_dwordx2 s[4:5], s[0:1], 0")
    e("s_load_dwordx2 s[6:7], s[0:1], 32")
    e("s_load_dwordx2 s[12:13], s[0:1], 96")
    e("v_lshrrev_b32 v1, 6, v0")
    e("v_and_b32 v2, 63, v0")
    e("v_readfirstlane_b32 s30, v1")
    e("s_movk_i32 s31, 896")
    e("v_lshlrev_b32 v1, 4, v2")
    dma_voff(e, 2, 3, 4, 31)
    tr_addr(e, 2, 5, 6, 7, 8, False)
    e("s_lshl_b32 s32, s30, 14")
    e(f"s_add_u32 s32, s32, {RBASE}")
    e("v_add_u32 v5, s32, v5")
    e("v_add_u32 v6, s32, v6")
    e("s_lshl_b32 s33, s30, 7")
    e("v_add_u32 v3, s33, v3")
    e("s_waitcnt lgkmcnt(0)")
    srd(e, 16, 4, 5, 2048 * 896)
    srd(e, 20, 6, 7, 401408)
    srd(e, 24, 12, 13, WS_SIZE)
    e("s_lshl_b32 s34, s2, 15")
    e(f"s_add_u32 s34, s34, {OF_OFF}")
    e("s_lshl_b32 s35, s30, 10")
    e("s_mov_b32 s36, s35")
    for it in range(5):
        if it == 4:
            e("s_cmp_ge_u32 s30, 4")
            e("s_cbranch_scc1 K3_OFD")
        e("s_add_u32 s37, s34, s36")
        e("s_mov_b32 m0, s36")
        e("s_nop 0")
        e("buffer_load_dwordx4 v1, s[24:27], s37 offen lds")
        e("s_add_u32 s36, s36, 7168")
    e.label("K3_OFD")
    e("s_lshl_b32 s38, s2, 5")
    e("v_and_b32 v9, 31, v2")
    e("v_add_u32 v9, s38, v9")
    e("v_mul_lo_u32 v9, v9, s31")
    e("v_lshrrev_b32 v10, 5, v2")
    e("v_lshl_add_u32 v9, v10, 3, v9")
    e("v_add_u32 v9, s33, v9")
    for nt in range(2):
        for q in range(4):
            e(f"buffer_load_dwordx2 {vr(96+nt*8+q*2,2)}, v9, s[16:19], 0 offen offset:{nt*64+q*16}")
    ACC = [32, 48]
    for r in range(32, 64):
        e(f"v_mov_b32 v{r}, 0")
    e.vm = []

    def wdma(k):
        head, t = k >> 1, k & 1
        rb = head * 28 + 16 * t
        slot = k % RING
        e(f"s_add_u32 s40, s32, {slot*2048}")
        e("s_mov_b32 m0, s40")
        e(f"s_mov_b32 s41, {rb*896}")
        e.vmop("buffer_load_dwordx4 v3, s[20:23], s41 offen lds", f"W{k}")
        e(f"s_add_u32 s40, s32, {slot*2048+1024}")
        e("s_mov_b32 m0, s40")
        e(f"s_mov_b32 s41, {(rb+8)*896}")
        e.vmop("buffer_load_dwordx4 v3, s[20:23], s41 offen lds", f"W{k}")

    DW = 6
    for k in range(DW):
        wdma(k)
    e(f"s_waitcnt vmcnt({2*DW})")
    e("s_barrier")
    WF = [[64, 68], [72, 76]]
    OFR = [80, 84]

    def rd(k):
        p = k & 1
        slot = k % RING
        for nt in range(2):
            a = "v5" if nt == 0 else "v6"
            e(f"ds_read_b64_tr_b16 {vr(WF[p][nt],2)}, {a} offset:{slot*2048}")
            e(f"ds_read_b64_tr_b16 {vr(WF[p][nt]+2,2)}, {a} offset:{slot*2048+1024}")
        e(f"ds_read_b128 {vr(OFR[p],4)}, v1 offset:{k*1024}")

    e.vmwait("W0")
    rd(0)
    for k in range(32):
        if k + DW < 32:
            wdma(k + DW)
        if k + 1 < 32:
            e.vmwait(f"W{k+1}")
            e("s_waitcnt lgkmcnt(0)")
            rd(k + 1)
        else:
            e("s_waitcnt lgkmcnt(0)")
        p = k & 1
        for nt in range(2):
            e(f"{MFMA} {vr(ACC[nt],16)}, {vr(WF[p][nt],4)}, {vr(OFR[p],4)}, {vr(ACC[nt],16)}")
    e("s_nop 7")
    e("s_nop 7")
    for j in range(16):
        e(f"v_cvt_pk_bf16_f32 v{112+j}, v{32+2*j}, v{33+2*j}")
    for j in range(16):
        e(f"v_lshlrev_b32 v{32+2*j}, 16, v{112+j}")
        e(f"v_and_b32 v{33+2*j}, 0xffff0000, v{112+j}")
        e(f"v_lshlrev_b32 v{64+2*j}, 16, v{96+j}")
        e(f"v_and_b32 v{65+2*j}, 0xffff0000, v{96+j}")
    for r in range(32):
        e(f"v_add_f32 v{32+r}, v{32+r}, v{64+r}")
    for j in range(16):
        e(f"v_cvt_pk_bf16_f32 v{112+j}, v{32+2*j}, v{33+2*j}")
    e(f"v_add_u32 v11, {H_OFF}, v9")
    for nt in range(2):
        for q in range(4):
            e(f"buffer_store_dwordx2 {vr(112+nt*8+q*2,2)}, v11, s[24:27], 0 offen offset:{nt*64+q*16}")
    for j in range(16):
        e(f"v_lshlrev_b32 v{32+2*j}, 16, v{112+j}")
        e(f"v_and_b32 v{33+2*j}, 0xffff0000, v{112+j}")
    e("v_add_f32 v12, v32, v33")
    for r in range(2, 32):
        e(f"v_add_f32 v12, v12, v{32+r}")
    e("v_mov_b32 v13, v12")
    e("s_nop 1")
    e("v_permlane32_swap_b32 v12, v13")
    e("v_add_f32 v12, v12, v13")
    e("v_and_b32 v14, 31, v2")
    e("v_lshlrev_b32 v14, 2, v14")
    e(f"v_add_u32 v14, {STAT}, v14")
    e("v_add_u32 v15, s33, v14")
    e("ds_write_b32 v15, v12")
    e("s_waitcnt lgkmcnt(0)")
    e("s_barrier")
    for w in range(7):
        e(f"ds_read_b32 v{16+w}, v14 offset:{w*128}")
    e("s_waitcnt lgkmcnt(0)")
    e("v_add_f32 v12, v16, v17")
    for w in range(2, 7):
        e(f"v_add_f32 v12, v12, v{16+w}")
    e(f"v_mul_f32 v12, {f2u(1.0/448):#x}, v12")
    for r in range(32):
        e(f"v_sub_f32 v{32+r}, v{32+r}, v12")
    e("v_mul_f32 v13, v32, v32")
    for r in range(1, 32):
        e(f"v_fmac_f32 v13, v{32+r}, v{32+r}")
    e("v_mov_b32 v12, v13")
    e("s_nop 1")
    e("v_permlane32_swap_b32 v13, v12")
    e("v_add_f32 v13, v13, v12")
    e("ds_write_b32 v15, v13 offset:1024")
    e("s_waitcnt lgkmcnt(0)")
    e("s_barrier")
    for w in range(7):
        e(f"ds_read_b32 v{16+w}, v14 offset:{1024+w*128}")
    e("s_waitcnt lgkmcnt(0)")
    e("v_add_f32 v13, v16, v17")
    for w in range(2, 7):
        e(f"v_add_f32 v13, v13, v{16+w}")
    e(f"v_mul_f32 v13, {f2u(1.0/448):#x}, v13")
    e(f"v_add_f32 v12, {f2u(1e-5):#x}, v13")
    e("v_rsq_f32 v12, v12")
    e("s_nop 0")
    e("v_mul_f32 v13, v13, v12")
    e("v_mul_f32 v13, v13, v12")
    e(f"v_add_f32 v13, {f2u(1e-5):#x}, v13")
    e("v_rsq_f32 v13, v13")
    e("s_nop 0")
    e("v_mul_f32 v12, v12, v13")
    for r in range(32):
        e(f"v_mul_f32 v{32+r}, v12, v{32+r}")
    for j in range(16):
        e(f"v_cvt_pk_bf16_f32 v{112+j}, v{32+2*j}, v{33+2*j}")
    e("v_and_b32 v14, 31, v2")
    e("s_movk_i32 s42, 960")
    e("v_mul_lo_u32 v14, v14, s42")
    e("v_lshl_add_u32 v14, v10, 3, v14")
    e("v_add_u32 v14, s33, v14")
    for nt in range(2):
        for q in range(4):
            e(f"ds_write_b64 v14, {vr(112+nt*8+q*2,2)} offset:{nt*64+q*16}")
    e("s_waitcnt lgkmcnt(0)")
    e("s_barrier")
    e("v_lshrrev_b32 v15, 5, v2")
    e("v_lshlrev_b32 v15, 3, v15")
    e("v_bfe_u32 v16, v2, 2, 2")
    e("v_add_u32 v15, v15, v16")
    e("v_mul_lo_u32 v15, v15, s42")
    e("v_bfe_u32 v16, v2, 4, 1")
    e("v_lshl_add_u32 v15, v16, 5, v15")
    e("v_and_b32 v16, 3, v2")
    e("v_lshl_add_u32 v15, v16, 3, v15")
    e("v_add_u32 v15, s33, v15")
    for nt in range(2):
        for t in range(2):
            b = 64 + (nt * 2 + t) * 4
            e(f"ds_read_b64_tr_b16 {vr(b,2)}, v15 offset:{t*16*960+nt*64}")
            e(f"ds_read_b64_tr_b16 {vr(b+2,2)}, v15 offset:{t*16*960+nt*64+4*960}")
    e("s_waitcnt lgkmcnt(0)")
    e("s_lshl_b32 s43, s30, 18")
    e("s_lshl_b32 s44, s2, 11")
    e("s_add_u32 s43, s43, s44")
    e(f"s_add_u32 s43, s43, {HH_OFF}")
    e(f"s_add_u32 s45, s43, {128*1024}")
    for nt in range(2):
        for t in range(2):
            b = 64 + (nt * 2 + t) * 4
            e(f"buffer_store_dwordx4 {vr(b,4)}, v1, s[24:27], s{43 if nt==0 else 45} offen offset:{t*1024}")
    e.label("K3_END")
    e("s_endpgm")
    return e.text(), desc("k3_kernel", 128), "; @launch kernel=k3_kernel grid=(64,1,1) block=(448,1,1) lds=149504"


def kmlp(which):
    e = E()
    name = "k4_kernel" if which == 4 else "k5_kernel"
    L = "K4" if which == 4 else "K5"
    header(e, name)
    if which == 4:
        KS, NWG, NCB, pitch, wsize = 32, 196, 28, 3584, 2048 * 3584
        F_OFF, FSTEPS, natural = HH_OFF, 128, True
        woff, boff = 48, 56
    else:
        KS, NWG, NCB, pitch, wsize = 28, 224, 32, 4096, 1792 * 4096
        F_OFF, FSTEPS, natural = UF_OFF, 112, False
        woff, boff = 64, 72
    RING, DW, DF = 16, 12, 8
    e(f"s_cmp_ge_u32 s2, {NWG}")
    e(f"s_cbranch_scc1 {L}_END")
    e(f"s_load_dwordx2 s[6:7], s[0:1], {woff}")
    e(f"s_load_dwordx2 s[8:9], s[0:1], {boff}")
    e("s_load_dwordx2 s[10:11], s[0:1], 80")
    e("s_load_dwordx2 s[12:13], s[0:1], 96")
    e("v_lshrrev_b32 v1, 6, v0")
    e("v_and_b32 v2, 63, v0")
    e("v_readfirstlane_b32 s30, v1")
    e("s_mov_b32 s33, 0x24924925")
    e("s_mul_hi_u32 s29, s2, s33")
    e("s_mul_i32 s33, s29, 7")
    e("s_sub_u32 s28, s2, s33")
    e(f"s_movk_i32 s31, {pitch}")
    e("v_lshlrev_b32 v1, 4, v2")
    dma_voff(e, 2, 3, 4, 31)
    tr_addr(e, 2, 5, 6, 7, 8, natural)
    e("s_lshl_b32 s32, s30, 15")
    e("v_add_u32 v5, s32, v5")
    e("v_add_u32 v6, s32, v6")
    e("s_lshl_b32 s33, s29, 7")
    e("v_add_u32 v3, s33, v3")
    e("s_waitcnt lgkmcnt(0)")
    srd(e, 20, 6, 7, wsize)
    srd(e, 24, 12, 13, WS_SIZE)
    e(f"s_mul_i32 s34, s30, {KS*16*pitch}")
    e(f"s_mul_i32 s35, s28, {2*FSTEPS*1024}")
    e(f"s_mul_i32 s36, s30, {KS*1024}")
    e("s_add_u32 s35, s35, s36")
    e(f"s_add_u32 s35, s35, {F_OFF}")
    e(f"s_add_u32 s36, s35, {FSTEPS*1024}")
    ACC = lambda a, b: 64 + (a * 2 + b) * 16
    for r in range(64, 128):
        e(f"v_mov_b32 v{r}, 0")
    FR = lambda k, b: 128 + ((k % DF) * 2 + b) * 4
    WF = lambda p, nt: 192 + (p * 2 + nt) * 4

    def wdma(k):
        slot = k % RING
        e(f"s_add_u32 s40, s32, {slot*2048}")
        e("s_mov_b32 m0, s40")
        e(f"s_add_u32 s41, s34, {k*16*pitch}")
        e.vmop("buffer_load_dwordx4 v3, s[20:23], s41 offen lds", f"W{k}")
        e(f"s_add_u32 s40, s32, {slot*2048+1024}")
        e("s_mov_b32 m0, s40")
        e(f"s_add_u32 s41, s34, {(k*16+8)*pitch}")
        e.vmop("buffer_load_dwordx4 v3, s[20:23], s41 offen lds", f"W{k}")

    def fld(k):
        e(f"s_add_u32 s42, s35, {k*1024}")
        e.vmop(f"buffer_load_dwordx4 {vr(FR(k,0),4)}, v1, s[24:27], s42 offen", f"F{k}")
        e(f"s_add_u32 s42, s36, {k*1024}")
        e.vmop(f"buffer_load_dwordx4 {vr(FR(k,1),4)}, v1, s[24:27], s42 offen", f"F{k}")

    def rd(k):
        p = k & 1
        slot = k % RING
        o2 = 512 if natural else 1024
        for nt in range(2):
            a = "v5" if nt == 0 else "v6"
            e(f"ds_read_b64_tr_b16 {vr(WF(p,nt),2)}, {a} offset:{slot*2048}")
            e(f"ds_read_b64_tr_b16 {vr(WF(p,nt)+2,2)}, {a} offset:{slot*2048+o2}")

    for j in range(-DW, 0):
        wdma(j + DW)
        if j + DF >= 0:
            fld(j + DF)
    e.vmwait("W0")
    rd(0)
    for k in range(KS):
        if k + DW < KS:
            wdma(k + DW)
        e.vmwait([f"W{k+1}", f"F{k}"] if k + 1 < KS else [f"F{k}"])
        e("s_waitcnt lgkmcnt(0)")
        if k + 1 < KS:
            rd(k + 1)
        p = k & 1
        for a in range(2):
            for b in range(2):
                if which == 4:
                    e(f"{MFMA} {vr(ACC(a,b),16)}, {vr(WF(p,a),4)}, {vr(FR(k,b),4)}, {vr(ACC(a,b),16)}")
                else:
                    e(f"{MFMA} {vr(ACC(a,b),16)}, {vr(FR(k,b),4)}, {vr(WF(p,a),4)}, {vr(ACC(a,b),16)}")
        if k + DF < KS:
            fld(k + DF)
    e("s_nop 7")
    e("s_nop 7")
    e("v_add_u32 v9, s32, v1")
    for t in range(4):
        for q in range(4):
            e(f"ds_write_b128 v9, {vr(64+t*16+q*4,4)} offset:{t*4096+q*1024}")
    e("s_waitcnt lgkmcnt(0)")
    e("s_barrier")
    e("s_lshl_b32 s40, s30, 12")
    e("v_add_u32 v9, s40, v1")
    e("v_add_u32 v7, 0x10000, v9")
    for src in range(4):
        for q in range(4):
            e(f"ds_read_b128 {vr(128+src*16+q*4,4)}, {'v9' if src < 2 else 'v7'} offset:{(src&1)*32768+q*1024}")
    e("s_waitcnt lgkmcnt(0)")
    for r in range(16):
        e(f"v_add_f32 v{128+r}, v{128+r}, v{144+r}")
        e(f"v_add_f32 v{160+r}, v{160+r}, v{176+r}")
    for r in range(16):
        e(f"v_add_f32 v{128+r}, v{128+r}, v{160+r}")
    e("s_lshr_b32 s41, s30, 1")
    e("s_and_b32 s42, s30, 1")
    e("v_lshrrev_b32 v10, 5, v2")
    if which == 4:
        srd(e, 16, 8, 9, 1792 * 2)
        e("s_lshl_b32 s43, s29, 6")
        e("s_lshl_b32 s44, s41, 5")
        e("s_add_u32 s43, s43, s44")
        e("s_lshl_b32 s44, s43, 1")
        e("v_lshlrev_b32 v11, 3, v10")
        for q in range(4):
            e(f"buffer_load_dwordx2 {vr(16+2*q,2)}, v11, s[16:19], s44 offen offset:{q*16}")
        e("s_waitcnt vmcnt(0)")
        for j in range(8):
            e(f"v_lshlrev_b32 v{32+2*j}, 16, v{16+j}")
            e(f"v_and_b32 v{33+2*j}, 0xffff0000, v{16+j}")
        for r in range(16):
            e(f"v_add_f32 v{128+r}, v{128+r}, v{32+r}")
        c1 = -2.0 * LOG2E * 0.7978845608028654
        c3 = c1 * 0.044715
        e(f"s_mov_b32 s45, {f2u(c3):#x}")
        e(f"s_mov_b32 s46, {f2u(c1):#x}")
        for r in range(16):
            e(f"v_mul_f32 v{32+r}, v{128+r}, v{128+r}")
        for r in range(16):
            e(f"v_mov_b32 v{48+r}, s46")
        for r in range(16):
            e(f"v_fma_f32 v{32+r}, v{32+r}, s45, v{48+r}")
        for r in range(16):
            e(f"v_mul_f32 v{32+r}, v{32+r}, v{128+r}")
        for r in range(16):
            e(f"v_exp_f32 v{32+r}, v{32+r}")
        for r in range(16):
            e(f"v_add_f32 v{32+r}, 1.0, v{32+r}")
        for r in range(16):
            e(f"v_rcp_f32 v{32+r}, v{32+r}")
        e("s_nop 0")
        for r in range(16):
            e(f"v_mul_f32 v{128+r}, v{128+r}, v{32+r}")
        for j in range(8):
            e(f"v_cvt_pk_bf16_f32 v{16+j}, v{128+2*j}, v{129+2*j}")
        e("s_lshl_b32 s43, s28, 1")
        e("s_add_u32 s43, s43, s42")
        e("s_mul_i32 s43, s43, 112")
        e("s_lshl_b32 s44, s29, 2")
        e("s_lshl_b32 s45, s41, 1")
        e("s_add_u32 s44, s44, s45")
        e("s_add_u32 s43, s43, s44")
        e("s_lshl_b32 s43, s43, 10")
        e(f"s_add_u32 s43, s43, {UF_OFF}")
        e("buffer_store_dwordx4 v[16:19], v1, s[24:27], s43 offen")
        e("buffer_store_dwordx4 v[20:23], v1, s[24:27], s43 offen offset:1024")
    else:
        srd(e, 16, 8, 9, 2048 * 2)
        srd(e, 44, 10, 11, 2048 * 896)
        e("s_lshl_b32 s43, s29, 6")
        e("s_lshl_b32 s48, s41, 5")
        e("s_add_u32 s43, s43, s48")
        e("v_and_b32 v11, 31, v2")
        e("v_add_u32 v11, s43, v11")
        e("v_lshlrev_b32 v12, 1, v11")
        e("buffer_load_ushort v13, v12, s[16:19], 0 offen")
        e("s_movk_i32 s49, 896")
        e("v_mul_lo_u32 v14, v11, s49")
        e("v_lshl_add_u32 v14, v10, 3, v14")
        e("s_lshl_b32 s48, s28, 7")
        e("s_lshl_b32 s49, s42, 6")
        e("s_add_u32 s48, s48, s49")
        e("v_add_u32 v14, s48, v14")
        e(f"v_add_u32 v15, {H_OFF}, v14")
        for q in range(4):
            e(f"buffer_load_dwordx2 {vr(16+2*q,2)}, v15, s[24:27], 0 offen offset:{q*16}")
        e("s_waitcnt vmcnt(0)")
        e("v_lshlrev_b32 v13, 16, v13")
        for r in range(16):
            e(f"v_add_f32 v{128+r}, v{128+r}, v13")
        for j in range(8):
            e(f"v_cvt_pk_bf16_f32 v{24+j}, v{128+2*j}, v{129+2*j}")
        for j in range(8):
            e(f"v_lshlrev_b32 v{128+2*j}, 16, v{24+j}")
            e(f"v_and_b32 v{129+2*j}, 0xffff0000, v{24+j}")
            e(f"v_lshlrev_b32 v{32+2*j}, 16, v{16+j}")
            e(f"v_and_b32 v{33+2*j}, 0xffff0000, v{16+j}")
        for r in range(16):
            e(f"v_add_f32 v{128+r}, v{128+r}, v{32+r}")
        for j in range(8):
            e(f"v_cvt_pk_bf16_f32 v{24+j}, v{128+2*j}, v{129+2*j}")
        for q in range(4):
            e(f"buffer_store_dwordx2 {vr(24+2*q,2)}, v14, s[44:47], 0 offen offset:{q*16}")
    e.label(f"{L}_END")
    e("s_endpgm")
    return e.text(), desc(name, 208), f"; @launch kernel={name} grid=({NWG},1,1) block=(256,1,1) lds=131072"


def build(which=(1, 2, 3, 4, 5)):
    gens = {1: k1, 2: k2, 3: k3, 4: lambda: kmlp(4), 5: lambda: kmlp(5)}
    ref = open(f"cdna_kernels/{NAME}.s.ref").read().splitlines()
    head = [l for l in ref if l.startswith(";") and "@launch" not in l and "Override" not in l and "grid=ceil" not in l]
    launches, bodies = [], []
    for w in which:
        t, d, l = gens[w]()
        launches.append(l)
        bodies.append(t + d)
    out = "\n".join(head) + "\n" + "\n".join(launches) + "\n"
    out += '.amdgcn_target "amdgcn-amd-amdhsa--gfx950"\n.text\n'
    out += "".join(bodies)
    return out


if __name__ == "__main__":
    s = build()
    open(f"cdna_kernels/{NAME}.s", "w").write(s)
    print("written", len(s), "bytes")
```

```python
import sys, os
DIAG = int(os.environ.get("DIAG", "0"))
EXP = os.environ.get("EXP", "")

NAME = "sequential_preLN__grouped_kv_mqa__mixer_token_mlp__prompt"

QF_OFF = 0x000000
KV_OFF = 0x200000
OF_OFF = 0x240000
H_OFF = 0x440000
HH_OFF = 0x600000
UF_OFF = 0x800000
WS_SIZE = 0x1000000

LOG2E = 1.4426950408889634
QSCALE = LOG2E / (28.0 ** 0.5)


def f2u(x):
    import struct
    return struct.unpack("<I", struct.pack("<f", x))[0]


class E:
    def __init__(self):
        self.lines = []
        self.vm = []
        self.nst = 0

    def __call__(self, s):
        self.lines.append("    " + s)

    def label(self, s):
        self.lines.append(s + ":")

    def c(self, s):
        self.lines.append("    ; " + s)

    def vmop(self, s, tag):
        self(s)
        self.vm.append(tag)

    def vmwait(self, tags):
        if isinstance(tags, str):
            tags = [tags]
        last = -1
        for i, t in enumerate(self.vm):
            if t in tags:
                last = i
        if last < 0:
            return
        n = len(self.vm) - 1 - last
        assert n <= 63, n
        self(f"s_waitcnt vmcnt({n})")
        self.vm = self.vm[last + 1:]

    def stamp(self):
        if not DIAG:
            return
        i = self.nst
        self.nst += 1
        self(f"s_memtime s[{64+2*i}:{65+2*i}]")

    def dump(self, kid, ws_srd):
        if not DIAG:
            return
        self("s_waitcnt lgkmcnt(0) vmcnt(0)")
        self("v_lshrrev_b32 v250, 6, v0") if False else None
        self("s_lshl_b32 s98, s2, 3")
        self("s_add_u32 s98, s98, s30")
        self("s_lshl_b32 s98, s98, 7")
        self(f"s_add_u32 s98, s98, {0xE00000 + kid*0x40000}")
        self("s_memrealtime s[94:95]")
        self("s_waitcnt lgkmcnt(0)")
        self("v_mov_b32 v1, s96")
        self("v_mov_b32 v2, 120")
        self(f"buffer_store_dword v1, v2, s[{ws_srd}:{ws_srd+3}], s98 offen")
        self("s_nop 1")
        self("v_mov_b32 v1, s94")
        self("v_mov_b32 v2, 124")
        self(f"buffer_store_dword v1, v2, s[{ws_srd}:{ws_srd+3}], s98 offen")
        self("s_nop 1")
        for i in range(self.nst):
            self(f"v_mov_b32 v1, s{64+2*i}")
            self(f"v_mov_b32 v2, {i*4}")
            self(f"buffer_store_dword v1, v2, s[{ws_srd}:{ws_srd+3}], s98 offen")
            self("s_nop 1")

    def text(self):
        return "\n".join(self.lines) + "\n"


def srd(e, s, lo, hi, size):
    e(f"s_mov_b32 s{s}, s{lo}")
    e(f"s_and_b32 s{s+1}, s{hi}, 0xffff")
    e(f"s_mov_b32 s{s+2}, {size}")
    e(f"s_mov_b32 s{s+3}, 0x00020000")


def vr(a, n):
    return f"v[{a}:{a+n-1}]"


def header(e, name):
    e.lines.append(f".globl {name}")
    e.lines.append(".p2align 8")
    e.lines.append(f".type {name},@function")
    e.lines.append(f"{name}:")
    if DIAG:
        e("s_memrealtime s[96:97]")


def desc(name, vgpr, sgpr=102):
    acc = (vgpr + 3) // 4 * 4
    return f""".section .rodata,"a"
.p2align 6
.amdhsa_kernel {name}
  .amdhsa_next_free_vgpr {vgpr}
  .amdhsa_next_free_sgpr {sgpr}
  .amdhsa_accum_offset {acc}
  .amdhsa_group_segment_fixed_size 0
  .amdhsa_kernarg_size 104
  .amdhsa_user_sgpr_count 2
  .amdhsa_user_sgpr_kernarg_segment_ptr 1
  .amdhsa_system_sgpr_workgroup_id_x 1
.end_amdhsa_kernel
.text
"""


MFMA = "v_mfma_f32_32x32x16_bf16"


def k1():
    e = E()
    header(e, "k1_kernel")
    XB = 86016
    e("s_cmp_ge_u32 s2, 192")
    e("s_cbranch_scc1 K1_END")
    e("s_load_dwordx4 s[4:7], s[0:1], 0")
    e("s_load_dwordx4 s[8:11], s[0:1], 16")
    e("s_load_dwordx2 s[12:13], s[0:1], 96")
    e("v_lshrrev_b32 v1, 6, v0")
    e("v_and_b32 v2, 63, v0")
    e("v_readfirstlane_b32 s30, v1")
    e("s_mov_b32 s33, 0x2AAAAAAB")
    e("s_mul_hi_u32 s29, s2, s33")
    e("s_mul_i32 s33, s29, 6")
    e("s_sub_u32 s28, s2, s33")
    e("s_lshr_b32 s31, s30, 1")
    e("s_mul_i32 s32, s28, 3")
    e("s_add_u32 s32, s32, s31")
    e("v_lshlrev_b32 v6, 4, v2")
    e("s_waitcnt lgkmcnt(0)")
    e.stamp()
    srd(e, 16, 4, 5, 2048 * 896)
    srd(e, 24, 12, 13, WS_SIZE)
    e("s_lshl_b32 s38, s29, 3")
    e("s_add_u32 s38, s38, s30")
    e("s_mul_i32 s38, s38, 7168")
    e("s_mul_i32 s39, s30, 7296")
    e(f"s_add_u32 s39, s39, {XB}")
    e("s_mov_b64 s[50:51], exec")
    e("s_mov_b32 exec_hi, 0x00ffffff")
    for it in range(8):
        e("s_mov_b32 m0, s39")
        e("s_add_u32 s39, s39, 912")
        e("buffer_load_dwordx4 v6, s[16:19], s38 offen lds")
        e("s_add_u32 s38, s38, 896")
    e("s_mov_b64 exec, s[50:51]")
    e("s_cmp_ge_u32 s30, 6")
    e("s_cbranch_scc1 K1_NOW")
    e("s_cmp_lt_u32 s32, 16")
    e("s_cselect_b32 s20, s6, s8")
    e("s_cselect_b32 s21, s7, s9")
    e("s_mov_b32 s36, 896")
    e("s_cselect_b32 s34, s36, 56")
    e("s_mov_b32 s36, 401408")
    e("s_cselect_b32 s22, s36, 25088")
    e("s_mul_i32 s35, s32, 56")
    e("s_cselect_b32 s35, s35, 0")
    e("s_cmp_eq_u32 s32, 17")
    e("s_cselect_b32 s20, s10, s20")
    e("s_cselect_b32 s21, s11, s21")
    e("s_and_b32 s21, s21, 0xffff")
    e("s_mov_b32 s23, 0x00020000")
    e("v_lshrrev_b32 v3, 2, v2")
    e("v_mul_lo_u32 v4, v3, s34")
    e("v_and_b32 v5, 3, v2")
    e("v_lshl_add_u32 v4, v5, 4, v4")
    e("v_add_u32 v4, s35, v4")
    e("s_and_b32 s36, s30, 1")
    e("s_mul_i32 s36, s36, 224")
    e("s_mul_i32 s38, s36, s34")
    e("s_mul_i32 s39, s31, 28672")
    e("s_lshl_b32 s40, s36, 6")
    e("s_add_u32 s39, s39, s40")
    e("s_lshl_b32 s37, s34, 4")
    for it in range(14):
        e("s_mov_b32 m0, s39")
        e("s_add_u32 s39, s39, 1024")
        e("buffer_load_dwordx4 v4, s[20:23], s38 offen lds")
        e("s_add_u32 s38, s38, s37")
    e.stamp()
    e("s_waitcnt vmcnt(14)")
    e("s_branch K1_LN")
    e.label("K1_NOW")
    e.stamp()
    e("s_waitcnt vmcnt(0)")
    e.label("K1_LN")
    e.stamp()
    e("v_lshrrev_b32 v7, 3, v2")
    e("s_movk_i32 s43, 912")
    e("v_mul_lo_u32 v7, v7, s43")
    e("v_and_b32 v8, 7, v2")
    e("v_lshl_add_u32 v7, v8, 4, v7")
    e("s_mul_i32 s39, s30, 7296")
    e(f"s_add_u32 s39, s39, {XB}")
    e("v_add_u32 v7, s39, v7")
    for i in range(7):
        e(f"ds_read_b128 {vr(64+4*i,4)}, v7 offset:{i*128}")
    e("s_waitcnt lgkmcnt(0)")
    for j in range(28):
        e(f"v_lshlrev_b32 v{128+2*j}, 16, v{64+j}")
        e(f"v_and_b32 v{129+2*j}, 0xffff0000, v{64+j}")
    e("v_pk_add_f32 v[52:53], v[128:129], v[130:131]")
    e("v_pk_mul_f32 v[54:55], v[128:129], v[128:129]")
    e("v_pk_fma_f32 v[54:55], v[130:131], v[130:131], v[54:55]")
    for j in range(2, 28):
        e(f"v_pk_add_f32 v[52:53], v[52:53], {vr(128+2*j,2)}")
        e(f"v_pk_fma_f32 v[54:55], {vr(128+2*j,2)}, {vr(128+2*j,2)}, v[54:55]")
    e("v_add_f32 v52, v52, v53")
    e("v_add_f32 v54, v54, v55")
    for ctrl in ("quad_perm:[1,0,3,2]", "quad_perm:[2,3,0,1]", "row_half_mirror"):
        e("s_nop 1")
        e(f"v_add_f32_dpp v52, v52, v52 {ctrl} row_mask:0xf bank_mask:0xf")
        e(f"v_add_f32_dpp v54, v54, v54 {ctrl} row_mask:0xf bank_mask:0xf")
    e(f"v_mul_f32 v52, {f2u(1.0/448):#x}, v52")
    e(f"v_mul_f32 v54, {f2u(1.0/448):#x}, v54")
    e("v_fma_f32 v54, -v52, v52, v54")
    e(f"v_add_f32 v54, {f2u(1e-5):#x}, v54")
    e("v_rsq_f32 v54, v54")
    e("s_nop 0")
    e("v_mul_f32 v52, v52, v54")
    e("v_sub_f32 v52, 0, v52")
    e("v_mov_b32 v53, v52")
    e("v_mov_b32 v55, v54")
    for j in range(28):
        e(f"v_pk_fma_f32 {vr(128+2*j,2)}, {vr(128+2*j,2)}, v[54:55], v[52:53]")
    for j in range(28):
        e(f"v_cvt_pk_bf16_f32 v{64+j}, v{128+2*j}, v{129+2*j}")
    for i in range(7):
        e(f"ds_write_b128 v7, {vr(64+4*i,4)} offset:{i*128}")
    e("s_waitcnt lgkmcnt(0) vmcnt(0)")
    e("s_barrier")
    e.stamp()
    e("s_cmp_ge_u32 s30, 6")
    e("s_cbranch_scc1 K1_END")
    e("s_cmp_ge_u32 s30, 3")
    e("s_cselect_b32 s39, 1, 0")
    e("s_mul_i32 s40, s39, 3")
    e("s_sub_u32 s40, s30, s40")
    e("s_lshl_b32 s41, s29, 1")
    e("s_add_u32 s41, s41, s39")
    e("v_and_b32 v8, 31, v2")
    e("s_lshl_b32 s42, s39, 5")
    e("v_add_u32 v8, s42, v8")
    e("v_mul_lo_u32 v8, v8, s43")
    e("v_lshrrev_b32 v9, 5, v2")
    e("v_lshl_add_u32 v8, v9, 4, v8")
    e(f"v_add_u32 v8, {XB}, v8")
    e("v_lshrrev_b32 v10, 4, v2")
    e("v_and_b32 v11, 15, v2")
    e("v_lshrrev_b32 v12, 1, v10")
    e("v_lshlrev_b32 v12, 3, v12")
    e("v_lshrrev_b32 v13, 2, v11")
    e("v_add_u32 v12, v12, v13")
    e("v_lshlrev_b32 v12, 6, v12")
    e("v_and_b32 v13, 1, v10")
    e("v_lshl_add_u32 v12, v13, 5, v12")
    e("v_and_b32 v13, 3, v11")
    e("v_lshl_add_u32 v12, v13, 3, v12")
    e("s_mul_i32 s44, s40, 28672")
    e("v_add_u32 v12, s44, v12")
    e("s_mul_i32 s45, s28, 3")
    e("s_add_u32 s45, s45, s40")
    e("s_cmp_eq_u32 s45, 17")
    e("s_cbranch_scc1 K1_V")

    def mainloop(isv):
        first = True
        for b in range(4):
            for i in range(7):
                kk = b * 7 + i
                e(f"ds_read_b128 {vr(128+4*kk,4)}, v8 offset:{kk*32}")
                e(f"ds_read_b64_tr_b16 {vr(64+4*kk-(0),2) if False else vr(16+4*kk,2)}, v12 offset:{kk*1024}")
                e(f"ds_read_b64_tr_b16 {vr(18+4*kk,2)}, v12 offset:{kk*1024+256}")
        for b in range(4):
            e(f"s_waitcnt lgkmcnt({min(15, (3-b)*21)})") if (3 - b) * 21 <= 15 else None
            if b == 0:
                pass
        return

    def mainloop2(isv):
        for b in range(4):
            for i in range(7):
                kk = b * 7 + i
                e(f"ds_read_b128 {vr(128+4*kk,4)}, v8 offset:{kk*32}")
                e(f"ds_read_b64_tr_b16 {vr(16+4*kk,2)}, v12 offset:{kk*1024}")
                e(f"ds_read_b64_tr_b16 {vr(18+4*kk,2)}, v12 offset:{kk*1024+256}")
            if b >= 1:
                e("s_waitcnt lgkmcnt(15)")
                e("s_waitcnt lgkmcnt(15)")
        return

    def mainloop3(isv):
        steps = list(range(28))
        nb = 4
        issued = 0
        first = True

        def issue(kk):
            e(f"ds_read_b128 {vr(128+4*kk,4)}, v8 offset:{kk*32}")
            e(f"ds_read_b64_tr_b16 {vr(16+4*kk,2)}, v12 offset:{kk*1024}")
            e(f"ds_read_b64_tr_b16 {vr(18+4*kk,2)}, v12 offset:{kk*1024+256}")
        for kk in range(nb):
            issue(kk)
        for kk in steps:
            if kk + nb < 28:
                issue(kk + nb)
                e(f"s_waitcnt lgkmcnt({3*nb})")
            else:
                e(f"s_waitcnt lgkmcnt({3*(27-kk)})")
            w = vr(16 + 4 * kk, 4)
            x = vr(128 + 4 * kk, 4)
            c = "0" if kk == 0 else "v[240:255]"
            if isv:
                e(f"{MFMA} v[240:255], {x}, {w}, {c}")
            else:
                e(f"{MFMA} v[240:255], {w}, {x}, {c}")
        e("s_nop 7")
        e("s_nop 7")

    mainloop3(False)
    e.stamp()
    e("s_cmp_lt_u32 s45, 16")
    e(f"s_cselect_b32 s46, {f2u(QSCALE):#x}, 1.0")
    e("v_cmp_eq_u32 vcc, 1, v9")
    for r in range(16):
        e(f"v_mul_f32 v{240+r}, s46, v{240+r}")
    e("v_mov_b32 v3, 0")
    for r in range(12, 16):
        e(f"v_cndmask_b32 v{240+r}, v{240+r}, v3, vcc")
    for j in range(8):
        e(f"v_cvt_pk_bf16_f32 v{64+j}, v{240+2*j}, v{241+2*j}")
    e("s_lshl_b32 s47, s45, 6")
    e("s_add_u32 s47, s47, s41")
    e("s_lshl_b32 s47, s47, 11")
    e(f"s_add_u32 s47, s47, {QF_OFF}")
    e("s_lshl_b32 s48, s41, 12")
    e(f"s_add_u32 s48, s48, {KV_OFF}")
    e("s_cmp_lt_u32 s45, 16")
    e("s_cselect_b32 s47, s47, s48")
    e("buffer_store_dwordx4 v[64:67], v6, s[24:27], s47 offen")
    e("buffer_store_dwordx4 v[68:71], v6, s[24:27], s47 offen offset:1024")
    e.stamp()
    e.dump(0, 24)
    e("s_endpgm")
    e.label("K1_V")
    mainloop3(True)
    e("v_and_b32 v3, 31, v2")
    e("v_cmp_eq_u32 vcc, 28, v3")
    e("v_cmp_lt_u32 s[52:53], 28, v3")
    e("v_mov_b32 v4, 1.0")
    e("v_mov_b32 v5, 0")
    for r in range(16):
        e(f"v_cndmask_b32 v{240+r}, v{240+r}, v4, vcc")
    for r in range(16):
        e(f"v_cndmask_b32 v{240+r}, v{240+r}, v5, s[52:53]")
    for j in range(8):
        e(f"v_cvt_pk_bf16_f32 v{64+j}, v{240+2*j}, v{241+2*j}")
    e("s_lshl_b32 s48, s41, 12")
    e(f"s_add_u32 s48, s48, {KV_OFF + 2048}")
    e("buffer_store_dwordx4 v[64:67], v6, s[24:27], s48 offen")
    e("buffer_store_dwordx4 v[68:71], v6, s[24:27], s48 offen offset:1024")
    e.label("K1_END")
    e("s_endpgm")
    return e.text(), desc("k1_kernel", 256), "; @launch kernel=k1_kernel grid=(192,1,1) block=(512,1,1) lds=144384"


def k2():
    e = E()
    header(e, "k2_kernel")
    T_RESC = 8.0
    Q0, Q1 = 16, 20
    NEGM = 24
    S = [40, 56]
    O = 72
    P = 88
    KF = [96, 104]
    VF = [112, 120]
    e("s_cmp_ge_u32 s2, 256")
    e("s_cbranch_scc1 K2_END")
    e("s_load_dwordx2 s[4:5], s[0:1], 96")
    e("v_lshrrev_b32 v1, 6, v0")
    e("v_and_b32 v2, 63, v0")
    e("v_readfirstlane_b32 s30, v1")
    e("s_lshr_b32 s31, s2, 4")
    e("s_and_b32 s32, s2, 15")
    e("s_lshl_b32 s33, s32, 2")
    e("s_add_u32 s33, s33, s30")
    e("v_lshlrev_b32 v1, 4, v2")
    e("s_waitcnt lgkmcnt(0)")
    e.stamp()
    srd(e, 8, 4, 5, WS_SIZE)
    e("s_cmp_eq_u32 s30, 4")
    e("s_cbranch_scc1 K2_LOADER")
    e("s_lshl_b32 s34, s31, 6")
    e("s_add_u32 s34, s34, s33")
    e("s_lshl_b32 s34, s34, 11")
    e(f"s_add_u32 s34, s34, {QF_OFF}")
    e(f"buffer_load_dwordx4 {vr(Q0,4)}, v1, s[8:11], s34 offen")
    e(f"buffer_load_dwordx4 {vr(Q1,4)}, v1, s[8:11], s34 offen offset:1024")
    for r in range(16):
        e(f"v_mov_b32 v{O+r}, 0")
        e(f"v_mov_b32 v{NEGM+r}, 0")
    e("v_mov_b32 v2, v1")
    e("v_add_u32 v3, 32768, v1")
    e.stamp()
    e("s_waitcnt vmcnt(0)")
    e("s_barrier")
    e.stamp()
    e(f"ds_read_b128 {vr(KF[0],4)}, v2 offset:0")
    e(f"ds_read_b128 {vr(KF[0]+4,4)}, v2 offset:1024")
    e(f"ds_read_b128 {vr(KF[1],4)}, v2 offset:4096")
    e(f"ds_read_b128 {vr(KF[1]+4,4)}, v2 offset:5120")
    e(f"ds_read_b128 {vr(VF[0],4)}, v2 offset:2048")
    e(f"ds_read_b128 {vr(VF[0]+4,4)}, v2 offset:3072")
    e("s_waitcnt lgkmcnt(0)")
    e(f"{MFMA} {vr(S[0],16)}, {vr(KF[0],4)}, {vr(Q0,4)}, 0")
    e(f"{MFMA} {vr(S[0],16)}, {vr(KF[0]+4,4)}, {vr(Q1,4)}, {vr(S[0],16)}")
    e("s_nop 7")
    e("s_nop 7")

    def maxtree(sb):
        e(f"v_max3_f32 v4, v{sb}, v{sb+1}, v{sb+2}")
        e(f"v_max3_f32 v5, v{sb+3}, v{sb+4}, v{sb+5}")
        e(f"v_max3_f32 v6, v{sb+6}, v{sb+7}, v{sb+8}")
        e(f"v_max3_f32 v7, v{sb+9}, v{sb+10}, v{sb+11}")
        e(f"v_max3_f32 v4, v4, v{sb+12}, v{sb+13}")
        e(f"v_max3_f32 v5, v5, v{sb+14}, v{sb+15}")
        e("v_max3_f32 v4, v4, v6, v7")
        e("v_max_f32 v4, v4, v5")

    def rescale(sb, first):
        e("s_nop 7")
        e("s_nop 7")
        if not first:
            e("v_mov_b32 v4, v6")
        e("v_mov_b32 v5, v4")
        e("s_nop 1")
        e("v_permlane32_swap_b32 v4, v5")
        e("v_max_f32 v4, v4, v5")
        if not first:
            e("v_max_f32 v4, 0, v4")
            e("v_sub_f32 v5, 0, v4")
            e("v_exp_f32 v5, v5")
            e("s_nop 0")
            for r in range(16):
                e(f"v_mul_f32 v{O+r}, v5, v{O+r}")
        for r in range(16):
            e(f"v_sub_f32 v{sb+r}, v{sb+r}, v4")
        for r in range(16):
            e(f"v_sub_f32 v{NEGM+r}, v{NEGM+r}, v4")

    maxtree(S[0])
    rescale(S[0], True)
    for r in range(4):
        e(f"v_exp_f32 v{S[0]+r}, v{S[0]+r}")
    e("s_mov_b32 s44, 0")
    e(f"s_mov_b32 s45, {f2u(T_RESC):#x}")

    rare = []

    def tile(i, uid, last_chunk):
        p = i & 1
        sc, sn = S[p], S[1 - p]
        has_nxt = not (last_chunk and i == 7)
        has_k2 = not (last_chunk and i >= 6)
        if i == 6 and not last_chunk:
            e("s_barrier")
        def E_(r):
            e(f"v_exp_f32 v{sc+r}, v{sc+r}")

        def C_(j):
            e(f"v_cvt_pk_bf16_f32 v{P+j}, v{sc+2*j}, v{sc+2*j+1}")
        if has_nxt:
            e(f"{MFMA} {vr(sn,16)}, {vr(KF[1-p],4)}, {vr(Q0,4)}, {vr(NEGM,16)}")
        if has_k2 and "nolds" not in EXP:
            t2 = i + 2
            a, o = ("v2", t2 * 4096) if t2 < 8 else ("v3", (t2 - 8) * 4096)
            e(f"ds_read_b128 {vr(KF[p],4)}, {a} offset:{o}")
            e(f"ds_read_b128 {vr(KF[p]+4,4)}, {a} offset:{o+1024}")
        for r in range(4, 8):
            E_(r)
        if has_nxt:
            e(f"{MFMA} {vr(sn,16)}, {vr(KF[1-p]+4,4)}, {vr(Q1,4)}, {vr(sn,16)}")
        if has_nxt and "nolds" not in EXP:
            t1 = i + 1
            a, o = ("v2", t1 * 4096) if t1 < 8 else ("v3", (t1 - 8) * 4096)
            e(f"ds_read_b128 {vr(VF[1-p],4)}, {a} offset:{o+2048}")
            e(f"ds_read_b128 {vr(VF[1-p]+4,4)}, {a} offset:{o+3072}")
        E_(8)
        for j in range(4):
            C_(j)
        E_(9)
        E_(10)
        e(f"{MFMA} {vr(O,16)}, {vr(VF[p],4)}, {vr(P,4)}, {vr(O,16)}")
        X = []
        if has_nxt and "nomax" not in EXP:
            X = [f"v_max3_f32 v4, v{sn}, v{sn+1}, v{sn+2}",
                 f"v_max3_f32 v5, v{sn+3}, v{sn+4}, v{sn+5}",
                 f"v_max3_f32 v6, v{sn+6}, v{sn+7}, v{sn+8}",
                 f"v_max3_f32 v7, v{sn+9}, v{sn+10}, v{sn+11}",
                 f"v_max3_f32 v4, v4, v{sn+12}, v{sn+13}",
                 f"v_max3_f32 v5, v5, v{sn+14}, v{sn+15}",
                 "v_max3_f32 v6, v6, v7, v4",
                 "v_max_f32 v6, v6, v5",
                 "v_cmp_lt_f32 vcc, s45, v6"]

        def X_(n):
            for _ in range(n):
                if X:
                    e(X.pop(0))
        E_(11)
        E_(12)
        X_(2)
        E_(13)
        X_(2)
        E_(14)
        X_(2)
        E_(15)
        X_(1)
        if not X:
            e("s_nop 0")
        C_(4)
        X_(1)
        C_(5)
        X_(1)
        C_(6)
        C_(7)
        e("s_nop 1")
        e(f"{MFMA} {vr(O,16)}, {vr(VF[p]+4,4)}, {vr(P+4,4)}, {vr(O,16)}")
        if has_nxt:
            e("s_waitcnt lgkmcnt(0)")
            if "nomax" not in EXP:
                e(f"s_cbranch_vccnz K2_R_{uid}")
                e.label(f"K2_B_{uid}")
                rare.append((f"K2_R_{uid}", f"K2_B_{uid}", sn))
            for r in range(4):
                e(f"v_exp_f32 v{sn+r}, v{sn+r}")

    e.stamp()
    e.label("K2_LOOP")
    for i in range(8):
        tile(i, f"a{i}", False)
    e("v_mov_b32 v2, v3")
    e("v_add_u32 v3, 32768, v3")
    e("v_and_b32 v3, 0x1ffff, v3")
    e("s_add_u32 s44, s44, 1")
    e("s_cmp_lt_u32 s44, 7")
    e("s_cbranch_scc1 K2_LOOP")
    e.stamp()
    for i in range(8):
        tile(i, f"b{i}", True)
    e.stamp()
    e("s_nop 7")
    e("s_nop 7")
    e(f"v_mov_b32 v4, v{O+12}")
    e(f"v_mov_b32 v5, v{O+12}")
    e("s_nop 1")
    e("v_permlane32_swap_b32 v4, v5")
    e("v_rcp_f32 v5, v5")
    e("v_lshrrev_b32 v6, 9, v1")
    e("v_cmp_eq_u32 vcc, 1, v6")
    for r in range(16):
        e(f"v_mul_f32 v{O+r}, v5, v{O+r}")
    e("v_mov_b32 v7, 0")
    for r in range(12, 16):
        e(f"v_cndmask_b32 v{O+r}, v{O+r}, v7, vcc")
    for j in range(8):
        e(f"v_cvt_pk_bf16_f32 v{P+j}, v{O+2*j}, v{O+2*j+1}")
    e("s_lshl_b32 s34, s33, 4")
    e("s_add_u32 s34, s34, s31")
    e("s_lshl_b32 s34, s34, 11")
    e(f"s_add_u32 s34, s34, {OF_OFF}")
    e(f"buffer_store_dwordx4 {vr(P,4)}, v1, s[8:11], s34 offen")
    e(f"buffer_store_dwordx4 {vr(P+4,4)}, v1, s[8:11], s34 offen offset:1024")
    e.stamp()
    e.dump(1, 8)
    e("s_endpgm")
    e.label("K2_LOADER")

    def dma32(c):
        for g in range(8):
            e(f"s_mov_b32 m0, {(c % 4)*32768 + g*4096}")
            e(f"s_mov_b32 s40, {KV_OFF + c*32768 + g*4096}")
            for i in range(4):
                e(f"buffer_load_dwordx4 v1, s[8:11], s40 offen offset:{i*1024} lds")
    dma32(0)
    e("s_waitcnt vmcnt(0)")
    e("s_barrier")
    dma32(1)
    dma32(2)
    for c in range(7):
        e(f"s_waitcnt vmcnt({32 if c <= 5 else 0})")
        e("s_barrier")
        if c + 3 <= 7:
            dma32(c + 3)
    e("s_endpgm")
    for (rl, bl, sn) in rare:
        e.label(rl)
        rescale(sn, False)
        e(f"s_branch {bl}")
    e.label("K2_END")
    e("s_endpgm")
    return e.text(), desc("k2_kernel", 128), "; @launch kernel=k2_kernel grid=(256,1,1) block=(320,1,1) lds=131072"


def tr_addr(e, vl, va0, va1, vt0, vt1, natural):
    e(f"v_lshrrev_b32 v{vt0}, 5, v{vl}")
    e(f"v_lshlrev_b32 v{vt0}, {3 if natural else 2}, v{vt0}")
    e(f"v_bfe_u32 v{vt1}, v{vl}, 2, 2")
    e(f"v_add_u32 v{vt0}, v{vt0}, v{vt1}")
    e(f"v_lshlrev_b32 v{va0}, 7, v{vt0}")
    e(f"v_bfe_u32 v{vt1}, v{vl}, 4, 1")
    e(f"v_lshl_add_u32 v{va0}, v{vt1}, 5, v{va0}")
    e(f"v_and_b32 v{vt1}, 3, v{vl}")
    e(f"v_lshl_add_u32 v{va0}, v{vt1}, 3, v{va0}")
    e(f"v_bfe_u32 v{vt1}, v{vl}, 3, 1")
    e(f"v_lshlrev_b32 v{vt1}, 6, v{vt1}")
    e(f"v_xor_b32 v{va0}, v{va0}, v{vt1}")
    e(f"v_xor_b32 v{va1}, 64, v{va0}")


def dma_voff(e, vl, vd, vt, pitch_sreg):
    e(f"v_lshrrev_b32 v{vt}, 3, v{vl}")
    e(f"v_mul_lo_u32 v{vd}, v{vt}, s{pitch_sreg}")
    e(f"v_bfe_u32 v{vt}, v{vl}, 4, 1")
    e(f"v_lshlrev_b32 v{vt}, 2, v{vt}")
    e(f"v_xor_b32 v{vt}, v{vt}, v{vl}")
    e(f"v_and_b32 v{vt}, 7, v{vt}")
    e(f"v_lshl_add_u32 v{vd}, v{vt}, 4, v{vd}")


def k3():
    e = E()
    header(e, "k3_kernel")
    RING = 6
    RSZ = RING * 2048
    RBASE = 32768
    XR = RBASE + 7 * RSZ
    STAT = XR + 32 * 912
    e("s_cmp_ge_u32 s2, 64")
    e("s_cbranch_scc1 K3_END")
    e("s_load_dwordx2 s[4:5], s[0:1], 0")
    e("s_load_dwordx2 s[6:7], s[0:1], 32")
    e("s_load_dwordx2 s[12:13], s[0:1], 96")
    e("v_lshrrev_b32 v1, 6, v0")
    e("v_and_b32 v2, 63, v0")
    e("v_readfirstlane_b32 s30, v1")
    e("s_movk_i32 s31, 896")
    e("v_lshlrev_b32 v1, 4, v2")
    dma_voff(e, 2, 3, 4, 31)
    tr_addr(e, 2, 5, 6, 7, 8, False)
    e(f"s_mul_i32 s32, s30, {RSZ}")
    e(f"s_add_u32 s32, s32, {RBASE}")
    e("v_add_u32 v5, s32, v5")
    e("v_add_u32 v6, s32, v6")
    e("s_lshl_b32 s33, s30, 7")
    e("v_add_u32 v3, s33, v3")
    e("s_waitcnt lgkmcnt(0)")
    e.stamp()
    srd(e, 16, 4, 5, 2048 * 896)
    srd(e, 20, 6, 7, 401408)
    srd(e, 24, 12, 13, WS_SIZE)
    e.vm = []

    def wdma(k):
        head, t = k >> 1, k & 1
        rb = head * 28 + 16 * t
        slot = k % RING
        e(f"s_add_u32 s40, s32, {slot*2048}")
        e("s_mov_b32 m0, s40")
        e(f"s_mov_b32 s41, {rb*896}")
        e.vmop("buffer_load_dwordx4 v3, s[20:23], s41 offen lds", f"W{k}")
        e(f"s_add_u32 s40, s32, {slot*2048+1024}")
        e("s_mov_b32 m0, s40")
        e(f"s_mov_b32 s41, {(rb+8)*896}")
        e.vmop("buffer_load_dwordx4 v3, s[20:23], s41 offen lds", f"W{k}")

    DW = 5
    e("s_lshl_b32 s34, s2, 15")
    e(f"s_add_u32 s34, s34, {OF_OFF}")
    e("s_lshl_b32 s36, s30, 10")
    for it in range(5):
        if it == 4:
            e("s_min_u32 s36, s36, 31744")
        e("s_add_u32 s37, s34, s36")
        e("s_mov_b32 m0, s36")
        e("s_nop 0")
        e.vmop("buffer_load_dwordx4 v1, s[24:27], s37 offen lds", "OF")
        e("s_add_u32 s36, s36, 7168")
    for k in range(DW):
        wdma(k)
    e("s_lshl_b32 s38, s2, 5")
    e("s_add_u32 s38, s38, s30")
    e("s_mul_i32 s38, s38, 896")
    e("s_mul_i32 s39, s30, 912")
    e(f"s_add_u32 s39, s39, {XR}")
    e("s_mov_b64 s[50:51], exec")
    e("s_mov_b32 exec_hi, 0x00ffffff")
    for it in range(5):
        if it == 4:
            e("s_cmp_ge_u32 s30, 4")
            e("s_cselect_b32 s46, 6272, 0")
            e("s_sub_u32 s38, s38, s46")
            e("s_cselect_b32 s46, 6384, 0")
            e("s_sub_u32 s39, s39, s46")
        e("s_mov_b32 m0, s39")
        e(f"s_add_u32 s39, s39, {7*912}")
        e.vmop("buffer_load_dwordx4 v1, s[16:19], s38 offen lds", "X")
        e(f"s_add_u32 s38, s38, {7*896}")
    e("s_mov_b64 exec, s[50:51]")
    ACC = [32, 48]
    e.stamp()
    e.vmwait("OF")
    e("s_barrier")
    e.stamp()
    WF = [[64, 68], [72, 76]]
    OFR = [80, 84]

    def rd(k):
        p = k & 1
        slot = k % RING
        for nt in range(2):
            a = "v5" if nt == 0 else "v6"
            e(f"ds_read_b64_tr_b16 {vr(WF[p][nt],2)}, {a} offset:{slot*2048}")
            e(f"ds_read_b64_tr_b16 {vr(WF[p][nt]+2,2)}, {a} offset:{slot*2048+1024}")
        e(f"ds_read_b128 {vr(OFR[p],4)}, v1 offset:{k*1024}")

    e.vmwait("W0")
    rd(0)
    for k in range(32):
        if k + DW < 32:
            wdma(k + DW)
        if k + 1 < 32:
            e.vmwait(f"W{k+1}")
            e("s_waitcnt lgkmcnt(0)")
            rd(k + 1)
        else:
            e("s_waitcnt lgkmcnt(0)")
        p = k & 1
        for nt in range(2):
            c = "0" if k == 0 else vr(ACC[nt], 16)
            e(f"{MFMA} {vr(ACC[nt],16)}, {vr(WF[p][nt],4)}, {vr(OFR[p],4)}, {c}")
    e.stamp()
    e("s_waitcnt vmcnt(0)")
    e("s_barrier")
    e("v_and_b32 v9, 31, v2")
    e("s_movk_i32 s42, 912")
    e("v_mul_lo_u32 v9, v9, s42")
    e("v_lshrrev_b32 v10, 5, v2")
    e("v_lshl_add_u32 v9, v10, 3, v9")
    e("v_add_u32 v9, s33, v9")
    e(f"v_add_u32 v9, {XR}, v9")
    for nt in range(2):
        for q in range(4):
            e(f"ds_read_b64 {vr(96+nt*8+q*2,2)}, v9 offset:{nt*64+q*16}")
    for j in range(16):
        e(f"v_cvt_pk_bf16_f32 v{112+j}, v{32+2*j}, v{33+2*j}")
    e("s_waitcnt lgkmcnt(0)")
    for j in range(16):
        e(f"v_lshlrev_b32 v{32+2*j}, 16, v{112+j}")
        e(f"v_and_b32 v{33+2*j}, 0xffff0000, v{112+j}")
        e(f"v_lshlrev_b32 v{64+2*j}, 16, v{96+j}")
        e(f"v_and_b32 v{65+2*j}, 0xffff0000, v{96+j}")
    for j in range(16):
        e(f"v_pk_add_f32 {vr(32+2*j,2)}, {vr(32+2*j,2)}, {vr(64+2*j,2)}")
    for j in range(16):
        e(f"v_cvt_pk_bf16_f32 v{112+j}, v{32+2*j}, v{33+2*j}")
    e("s_mul_i32 s43, s2, 14")
    e("s_lshl_b32 s44, s30, 1")
    e("s_add_u32 s43, s43, s44")
    e("s_lshl_b32 s43, s43, 11")
    e(f"s_add_u32 s43, s43, {H_OFF}")
    for i in range(4):
        e(f"buffer_store_dwordx4 {vr(112+4*i,4)}, v1, s[24:27], s43 offen offset:{i*1024}")
    for j in range(16):
        e(f"v_lshlrev_b32 v{32+2*j}, 16, v{112+j}")
        e(f"v_and_b32 v{33+2*j}, 0xffff0000, v{112+j}")
    e("v_pk_add_f32 v[12:13], v[32:33], v[34:35]")
    for j in range(2, 16):
        e(f"v_pk_add_f32 v[12:13], v[12:13], {vr(32+2*j,2)}")
    e("v_add_f32 v12, v12, v13")
    e("v_mov_b32 v13, v12")
    e("s_nop 1")
    e("v_permlane32_swap_b32 v12, v13")
    e("v_add_f32 v12, v12, v13")
    e("v_and_b32 v14, 31, v2")
    e("v_lshlrev_b32 v14, 2, v14")
    e(f"v_add_u32 v14, {STAT}, v14")
    e("v_add_u32 v15, s33, v14")
    e("ds_write_b32 v15, v12")
    e("s_waitcnt lgkmcnt(0)")
    e("s_barrier")
    for w in range(7):
        e(f"ds_read_b32 v{16+w}, v14 offset:{w*128}")
    e("s_waitcnt lgkmcnt(0)")
    e("v_add_f32 v12, v16, v17")
    for w in range(2, 7):
        e(f"v_add_f32 v12, v12, v{16+w}")
    e(f"v_mul_f32 v12, {f2u(-1.0/448):#x}, v12")
    e("v_mov_b32 v13, v12")
    for j in range(16):
        e(f"v_pk_add_f32 {vr(32+2*j,2)}, {vr(32+2*j,2)}, v[12:13]")
    e("v_pk_mul_f32 v[12:13], v[32:33], v[32:33]")
    for j in range(1, 16):
        e(f"v_pk_fma_f32 v[12:13], {vr(32+2*j,2)}, {vr(32+2*j,2)}, v[12:13]")
    e("v_add_f32 v13, v12, v13")
    e("v_mov_b32 v12, v13")
    e("s_nop 1")
    e("v_permlane32_swap_b32 v13, v12")
    e("v_add_f32 v13, v13, v12")
    e("ds_write_b32 v15, v13 offset:1024")
    e("s_waitcnt lgkmcnt(0)")
    e("s_barrier")
    for w in range(7):
        e(f"ds_read_b32 v{16+w}, v14 offset:{1024+w*128}")
    e("s_waitcnt lgkmcnt(0)")
    e("v_add_f32 v13, v16, v17")
    for w in range(2, 7):
        e(f"v_add_f32 v13, v13, v{16+w}")
    e(f"v_mul_f32 v13, {f2u(1.0/448):#x}, v13")
    e(f"v_add_f32 v12, {f2u(1e-5):#x}, v13")
    e("v_rsq_f32 v12, v12")
    e("s_nop 0")
    e("v_mul_f32 v13, v13, v12")
    e("v_mul_f32 v13, v13, v12")
    e(f"v_add_f32 v13, {f2u(1e-5):#x}, v13")
    e("v_rsq_f32 v13, v13")
    e("s_nop 0")
    e("v_mul_f32 v12, v12, v13")
    e("v_mov_b32 v13, v12")
    for j in range(16):
        e(f"v_pk_mul_f32 {vr(32+2*j,2)}, {vr(32+2*j,2)}, v[12:13]")
    for j in range(16):
        e(f"v_cvt_pk_bf16_f32 v{112+j}, v{32+2*j}, v{33+2*j}")
    e("v_and_b32 v14, 31, v2")
    e("s_movk_i32 s42, 968")
    e("v_mul_lo_u32 v14, v14, s42")
    e("v_lshl_add_u32 v14, v10, 3, v14")
    e("v_add_u32 v14, s33, v14")
    for nt in range(2):
        for q in range(4):
            e(f"ds_write_b64 v14, {vr(112+nt*8+q*2,2)} offset:{nt*64+q*16}")
    e("s_waitcnt lgkmcnt(0)")
    e("s_barrier")
    e("v_lshrrev_b32 v15, 5, v2")
    e("v_lshlrev_b32 v15, 3, v15")
    e("v_bfe_u32 v16, v2, 2, 2")
    e("v_add_u32 v15, v15, v16")
    e("v_mul_lo_u32 v15, v15, s42")
    e("v_bfe_u32 v16, v2, 4, 1")
    e("v_lshl_add_u32 v15, v16, 5, v15")
    e("v_and_b32 v16, 3, v2")
    e("v_lshl_add_u32 v15, v16, 3, v15")
    e("v_add_u32 v15, s33, v15")
    for nt in range(2):
        for t in range(2):
            b = 64 + (nt * 2 + t) * 4
            e(f"ds_read_b64_tr_b16 {vr(b,2)}, v15 offset:{t*16*968+nt*64}")
            e(f"ds_read_b64_tr_b16 {vr(b+2,2)}, v15 offset:{t*16*968+nt*64+4*968}")
    e("s_waitcnt lgkmcnt(0)")
    e("s_lshl_b32 s43, s30, 18")
    e("s_lshl_b32 s44, s2, 11")
    e("s_add_u32 s43, s43, s44")
    e(f"s_add_u32 s43, s43, {HH_OFF}")
    e(f"s_add_u32 s45, s43, {128*1024}")
    for nt in range(2):
        for t in range(2):
            b = 64 + (nt * 2 + t) * 4
            e(f"buffer_store_dwordx4 {vr(b,4)}, v1, s[24:27], s{43 if nt==0 else 45} offen offset:{t*1024}")
    e.stamp()
    e.dump(2, 24)
    e.label("K3_END")
    e("s_endpgm")
    return e.text(), desc("k3_kernel", 128), f"; @launch kernel=k3_kernel grid=(64,1,1) block=(448,1,1) lds={STAT+2048}"


def kmlp(which):
    e = E()
    name = "k4_kernel" if which == 4 else "k5_kernel"
    L = "K4" if which == 4 else "K5"
    header(e, name)
    if which == 4:
        KS, NWG, NCB, pitch, wsize = 32, 200, 25, 3584, 2048 * 3584
        F_OFF, FSTEPS, natural = HH_OFF, 128, True
        woff, boff = 48, 56
    else:
        KS, NWG, NCB, pitch, wsize = 28, 224, 28, 4096, 1792 * 4096
        F_OFF, FSTEPS, natural = UF_OFF, 112, False
        woff, boff = 64, 72
    RING, DW, DF = 16, 12, 8
    e(f"s_cmp_ge_u32 s2, {NWG}")
    e(f"s_cbranch_scc1 {L}_END")
    e(f"s_load_dwordx2 s[6:7], s[0:1], {woff}")
    e(f"s_load_dwordx2 s[8:9], s[0:1], {boff}")
    e("s_load_dwordx2 s[10:11], s[0:1], 80")
    e("s_load_dwordx2 s[12:13], s[0:1], 96")
    e("v_lshrrev_b32 v1, 6, v0")
    e("v_and_b32 v2, 63, v0")
    e("v_readfirstlane_b32 s30, v1")
    e("s_and_b32 s33, s2, 7")
    e(f"s_mul_i32 s33, s33, {NCB}")
    e("s_lshr_b32 s34, s2, 3")
    e("s_add_u32 s34, s34, s33")
    if which == 4:
        e("s_cmp_ge_u32 s34, 196")
        e(f"s_cbranch_scc1 {L}_END")
    e("s_mov_b32 s33, 0x24924925")
    e("s_mul_hi_u32 s29, s34, s33")
    e("s_mul_i32 s33, s29, 7")
    e("s_sub_u32 s28, s34, s33")
    e(f"s_movk_i32 s31, {pitch}")
    e("v_lshlrev_b32 v1, 4, v2")
    dma_voff(e, 2, 3, 4, 31)
    tr_addr(e, 2, 5, 6, 7, 8, natural)
    e("s_lshl_b32 s32, s30, 15")
    e("v_add_u32 v5, s32, v5")
    e("v_add_u32 v6, s32, v6")
    e("s_lshl_b32 s33, s29, 7")
    e("v_add_u32 v3, s33, v3")
    e("s_waitcnt lgkmcnt(0)")
    e.stamp()
    srd(e, 20, 6, 7, wsize)
    srd(e, 24, 12, 13, WS_SIZE)
    e(f"s_mul_i32 s34, s30, {KS*16*pitch}")
    e(f"s_mul_i32 s35, s28, {2*FSTEPS*1024}")
    e(f"s_mul_i32 s36, s30, {KS*1024}")
    e("s_add_u32 s35, s35, s36")
    e(f"s_add_u32 s35, s35, {F_OFF}")
    e(f"s_add_u32 s36, s35, {FSTEPS*1024}")
    ACC = lambda a, b: 64 + (a * 2 + b) * 16
    for r in range(64, 128):
        e(f"v_mov_b32 v{r}, 0")
    FR = lambda k, b: 128 + ((k % DF) * 2 + b) * 4
    WF = lambda p, nt: 192 + (p * 2 + nt) * 4

    def wdma(k):
        slot = k % RING
        e(f"s_add_u32 s40, s32, {slot*2048}")
        e("s_mov_b32 m0, s40")
        e(f"s_add_u32 s41, s34, {k*16*pitch}")
        e.vmop("buffer_load_dwordx4 v3, s[20:23], s41 offen lds", f"W{k}")
        e(f"s_add_u32 s40, s32, {slot*2048+1024}")
        e("s_mov_b32 m0, s40")
        e(f"s_add_u32 s41, s34, {(k*16+8)*pitch}")
        e.vmop("buffer_load_dwordx4 v3, s[20:23], s41 offen lds", f"W{k}")

    def fld(k):
        e(f"s_add_u32 s42, s35, {k*1024}")
        e.vmop(f"buffer_load_dwordx4 {vr(FR(k,0),4)}, v1, s[24:27], s42 offen", f"F{k}")
        e(f"s_add_u32 s42, s36, {k*1024}")
        e.vmop(f"buffer_load_dwordx4 {vr(FR(k,1),4)}, v1, s[24:27], s42 offen", f"F{k}")

    def rd(k):
        p = k & 1
        slot = k % RING
        o2 = 512 if natural else 1024
        for nt in range(2):
            a = "v5" if nt == 0 else "v6"
            e(f"ds_read_b64_tr_b16 {vr(WF(p,nt),2)}, {a} offset:{slot*2048}")
            e(f"ds_read_b64_tr_b16 {vr(WF(p,nt)+2,2)}, {a} offset:{slot*2048+o2}")

    for j in range(-DW, 0):
        wdma(j + DW)
        if j + DF >= 0:
            fld(j + DF)
    e.stamp()
    e.vmwait("W0")
    e.stamp()
    rd(0)
    for k in range(KS):
        if k + DW < KS:
            wdma(k + DW)
        e.vmwait([f"W{k+1}", f"F{k}"] if k + 1 < KS else [f"F{k}"])
        e("s_waitcnt lgkmcnt(0)")
        if k + 1 < KS:
            rd(k + 1)
        p = k & 1
        for a in range(2):
            for b in range(2):
                if which == 4:
                    e(f"{MFMA} {vr(ACC(a,b),16)}, {vr(WF(p,a),4)}, {vr(FR(k,b),4)}, {vr(ACC(a,b),16)}")
                else:
                    e(f"{MFMA} {vr(ACC(a,b),16)}, {vr(FR(k,b),4)}, {vr(WF(p,a),4)}, {vr(ACC(a,b),16)}")
        if k + DF < KS:
            fld(k + DF)
    e("s_nop 7")
    e("s_nop 7")
    e.stamp()
    e("v_add_u32 v9, s32, v1")
    for t in range(4):
        for q in range(4):
            e(f"ds_write_b128 v9, {vr(64+t*16+q*4,4)} offset:{t*4096+q*1024}")
    e("s_waitcnt lgkmcnt(0)")
    e("s_barrier")
    e("s_lshl_b32 s40, s30, 12")
    e("v_add_u32 v9, s40, v1")
    e("v_add_u32 v7, 0x10000, v9")
    for src in range(4):
        for q in range(4):
            e(f"ds_read_b128 {vr(128+src*16+q*4,4)}, {'v9' if src < 2 else 'v7'} offset:{(src&1)*32768+q*1024}")
    e("s_waitcnt lgkmcnt(0)")
    for r in range(16):
        e(f"v_add_f32 v{128+r}, v{128+r}, v{144+r}")
        e(f"v_add_f32 v{160+r}, v{160+r}, v{176+r}")
    for r in range(16):
        e(f"v_add_f32 v{128+r}, v{128+r}, v{160+r}")
    e("s_lshr_b32 s41, s30, 1")
    e("s_and_b32 s42, s30, 1")
    e("v_lshrrev_b32 v10, 5, v2")
    if which == 4:
        srd(e, 16, 8, 9, 1792 * 2)
        e("s_lshl_b32 s43, s29, 6")
        e("s_lshl_b32 s44, s41, 5")
        e("s_add_u32 s43, s43, s44")
        e("s_lshl_b32 s44, s43, 1")
        e("v_lshlrev_b32 v11, 3, v10")
        for q in range(4):
            e(f"buffer_load_dwordx2 {vr(16+2*q,2)}, v11, s[16:19], s44 offen offset:{q*16}")
        e("s_waitcnt vmcnt(0)")
        for j in range(8):
            e(f"v_lshlrev_b32 v{32+2*j}, 16, v{16+j}")
            e(f"v_and_b32 v{33+2*j}, 0xffff0000, v{16+j}")
        for r in range(16):
            e(f"v_add_f32 v{128+r}, v{128+r}, v{32+r}")
        c1 = -2.0 * LOG2E * 0.7978845608028654
        c3 = c1 * 0.044715
        e(f"s_mov_b32 s45, {f2u(c3):#x}")
        e(f"s_mov_b32 s46, {f2u(c1):#x}")
        for r in range(16):
            e(f"v_mul_f32 v{32+r}, v{128+r}, v{128+r}")
        for r in range(16):
            e(f"v_mov_b32 v{48+r}, s46")
        for r in range(16):
            e(f"v_fma_f32 v{32+r}, v{32+r}, s45, v{48+r}")
        for r in range(16):
            e(f"v_mul_f32 v{32+r}, v{32+r}, v{128+r}")
        for r in range(16):
            e(f"v_exp_f32 v{32+r}, v{32+r}")
        for r in range(16):
            e(f"v_add_f32 v{32+r}, 1.0, v{32+r}")
        for r in range(16):
            e(f"v_rcp_f32 v{32+r}, v{32+r}")
        e("s_nop 0")
        for r in range(16):
            e(f"v_mul_f32 v{128+r}, v{128+r}, v{32+r}")
        for j in range(8):
            e(f"v_cvt_pk_bf16_f32 v{16+j}, v{128+2*j}, v{129+2*j}")
        e("s_lshl_b32 s43, s28, 1")
        e("s_add_u32 s43, s43, s42")
        e("s_mul_i32 s43, s43, 112")
        e("s_lshl_b32 s44, s29, 2")
        e("s_lshl_b32 s45, s41, 1")
        e("s_add_u32 s44, s44, s45")
        e("s_add_u32 s43, s43, s44")
        e("s_lshl_b32 s43, s43, 10")
        e(f"s_add_u32 s43, s43, {UF_OFF}")
        e("buffer_store_dwordx4 v[16:19], v1, s[24:27], s43 offen")
        e("buffer_store_dwordx4 v[20:23], v1, s[24:27], s43 offen offset:1024")
    else:
        srd(e, 16, 8, 9, 2048 * 2)
        srd(e, 44, 10, 11, 2048 * 896)
        e("s_lshl_b32 s43, s29, 6")
        e("s_lshl_b32 s48, s41, 5")
        e("s_add_u32 s43, s43, s48")
        e("v_and_b32 v11, 31, v2")
        e("v_add_u32 v11, s43, v11")
        e("v_lshlrev_b32 v12, 1, v11")
        e("buffer_load_ushort v13, v12, s[16:19], 0 offen")
        e("s_movk_i32 s49, 896")
        e("v_mul_lo_u32 v14, v11, s49")
        e("v_lshl_add_u32 v14, v10, 3, v14")
        e("s_lshl_b32 s48, s28, 7")
        e("s_lshl_b32 s49, s42, 6")
        e("s_add_u32 s48, s48, s49")
        e("v_add_u32 v14, s48, v14")
        e("s_lshl_b32 s50, s29, 1")
        e("s_add_u32 s50, s50, s41")
        e("s_mul_i32 s50, s50, 14")
        e("s_lshl_b32 s51, s28, 1")
        e("s_add_u32 s50, s50, s51")
        e("s_add_u32 s50, s50, s42")
        e("s_lshl_b32 s50, s50, 11")
        e(f"s_add_u32 s50, s50, {H_OFF}")
        e("buffer_load_dwordx4 v[16:19], v1, s[24:27], s50 offen")
        e("buffer_load_dwordx4 v[20:23], v1, s[24:27], s50 offen offset:1024")
        e("s_waitcnt vmcnt(0)")
        e("v_lshlrev_b32 v13, 16, v13")
        for r in range(16):
            e(f"v_add_f32 v{128+r}, v{128+r}, v13")
        for j in range(8):
            e(f"v_cvt_pk_bf16_f32 v{24+j}, v{128+2*j}, v{129+2*j}")
        for j in range(8):
            e(f"v_lshlrev_b32 v{128+2*j}, 16, v{24+j}")
            e(f"v_and_b32 v{129+2*j}, 0xffff0000, v{24+j}")
            e(f"v_lshlrev_b32 v{32+2*j}, 16, v{16+j}")
            e(f"v_and_b32 v{33+2*j}, 0xffff0000, v{16+j}")
        for r in range(16):
            e(f"v_add_f32 v{128+r}, v{128+r}, v{32+r}")
        for j in range(8):
            e(f"v_cvt_pk_bf16_f32 v{24+j}, v{128+2*j}, v{129+2*j}")
        for q in range(4):
            e(f"buffer_store_dwordx2 {vr(24+2*q,2)}, v14, s[44:47], 0 offen offset:{q*16}")
    e.stamp()
    e.dump(which - 1, 24)
    e.label(f"{L}_END")
    e("s_endpgm")
    return e.text(), desc(name, 208), f"; @launch kernel={name} grid=({NWG},1,1) block=(256,1,1) lds=131072"


def build(which=(1, 2, 3, 4, 5)):
    gens = {1: k1, 2: k2, 3: k3, 4: lambda: kmlp(4), 5: lambda: kmlp(5)}
    ref = open(f"cdna_kernels/{NAME}.s.ref").read().splitlines()
    head = [l for l in ref if l.startswith(";") and "@launch" not in l and "Override" not in l and "grid=ceil" not in l]
    launches, bodies = [], []
    for w in which:
        t, d, l = gens[w]()
        launches.append(l)
        bodies.append(t + d)
    out = "\n".join(head) + "\n" + "\n".join(launches) + "\n"
    out += '.amdgcn_target "amdgcn-amd-amdhsa--gfx950"\n.text\n'
    out += "".join(bodies)
    return out


if __name__ == "__main__":
    s = build()
    open(f"cdna_kernels/{NAME}.s", "w").write(s)
    print("written", len(s), "bytes")
```

```python
import sys, os
DIAG = int(os.environ.get("DIAG", "0"))
EXP = os.environ.get("EXP", "")

NAME = "sequential_preLN__grouped_kv_mqa__mixer_token_mlp__prompt"

QF_OFF = 0x000000
KV_OFF = 0x200000
OF_OFF = 0x240000
H_OFF = 0x440000
HH_OFF = 0x600000
UF_OFF = 0x800000
KN_OFF = 0x9F0000
WS_SIZE = 0x1000000

LOG2E = 1.4426950408889634
QSCALE = LOG2E / (28.0 ** 0.5)


def f2u(x):
    import struct
    return struct.unpack("<I", struct.pack("<f", x))[0]


class E:
    def __init__(self):
        self.lines = []
        self.vm = []
        self.nst = 0

    def __call__(self, s):
        self.lines.append("    " + s)

    def label(self, s):
        self.lines.append(s + ":")

    def c(self, s):
        self.lines.append("    ; " + s)

    def vmop(self, s, tag):
        self(s)
        self.vm.append(tag)

    def vmwait(self, tags):
        if isinstance(tags, str):
            tags = [tags]
        last = -1
        for i, t in enumerate(self.vm):
            if t in tags:
                last = i
        if last < 0:
            return
        n = len(self.vm) - 1 - last
        assert n <= 63, n
        self(f"s_waitcnt vmcnt({n})")
        self.vm = self.vm[last + 1:]

    def stamp(self):
        if not DIAG:
            return
        i = self.nst
        self.nst += 1
        self(f"s_memtime s[{64+2*i}:{65+2*i}]")

    def dump(self, kid, ws_srd):
        if not DIAG:
            return
        self("s_waitcnt lgkmcnt(0) vmcnt(0)")
        self("v_lshrrev_b32 v250, 6, v0") if False else None
        self("s_lshl_b32 s98, s2, 3")
        self("s_add_u32 s98, s98, s30")
        self("s_lshl_b32 s98, s98, 7")
        self(f"s_add_u32 s98, s98, {0xE00000 + kid*0x40000}")
        self("s_memrealtime s[94:95]")
        self("s_waitcnt lgkmcnt(0)")
        self("v_mov_b32 v1, s96")
        self("v_mov_b32 v2, 120")
        self(f"buffer_store_dword v1, v2, s[{ws_srd}:{ws_srd+3}], s98 offen")
        self("s_nop 1")
        self("v_mov_b32 v1, s94")
        self("v_mov_b32 v2, 124")
        self(f"buffer_store_dword v1, v2, s[{ws_srd}:{ws_srd+3}], s98 offen")
        self("s_nop 1")
        for i in range(self.nst):
            self(f"v_mov_b32 v1, s{64+2*i}")
            self(f"v_mov_b32 v2, {i*4}")
            self(f"buffer_store_dword v1, v2, s[{ws_srd}:{ws_srd+3}], s98 offen")
            self("s_nop 1")

    def text(self):
        return "\n".join(self.lines) + "\n"


def srd(e, s, lo, hi, size):
    e(f"s_mov_b32 s{s}, s{lo}")
    e(f"s_and_b32 s{s+1}, s{hi}, 0xffff")
    e(f"s_mov_b32 s{s+2}, {size}")
    e(f"s_mov_b32 s{s+3}, 0x00020000")


def vr(a, n):
    return f"v[{a}:{a+n-1}]"


def header(e, name):
    e.lines.append(f".globl {name}")
    e.lines.append(".p2align 8")
    e.lines.append(f".type {name},@function")
    e.lines.append(f"{name}:")
    if DIAG:
        e("s_memrealtime s[96:97]")


def desc(name, vgpr, sgpr=102):
    acc = (vgpr + 3) // 4 * 4
    return f""".section .rodata,"a"
.p2align 6
.amdhsa_kernel {name}
  .amdhsa_next_free_vgpr {vgpr}
  .amdhsa_next_free_sgpr {sgpr}
  .amdhsa_accum_offset {acc}
  .amdhsa_group_segment_fixed_size 0
  .amdhsa_kernarg_size 104
  .amdhsa_user_sgpr_count 2
  .amdhsa_user_sgpr_kernarg_segment_ptr 1
  .amdhsa_system_sgpr_workgroup_id_x 1
.end_amdhsa_kernel
.text
"""


MFMA = "v_mfma_f32_32x32x16_bf16"


def k1():
    e = E()
    header(e, "k1_kernel")
    XB = 86016
    e("s_cmp_ge_u32 s2, 192")
    e("s_cbranch_scc1 K1_END")
    e("s_load_dwordx4 s[4:7], s[0:1], 0")
    e("s_load_dwordx4 s[8:11], s[0:1], 16")
    e("s_load_dwordx2 s[12:13], s[0:1], 96")
    e("v_lshrrev_b32 v1, 6, v0")
    e("v_and_b32 v2, 63, v0")
    e("v_readfirstlane_b32 s30, v1")
    e("s_mov_b32 s33, 0x2AAAAAAB")
    e("s_mul_hi_u32 s29, s2, s33")
    e("s_mul_i32 s33, s29, 6")
    e("s_sub_u32 s28, s2, s33")
    e("s_lshr_b32 s31, s30, 1")
    e("s_mul_i32 s32, s28, 3")
    e("s_add_u32 s32, s32, s31")
    e("v_lshlrev_b32 v6, 4, v2")
    e("s_waitcnt lgkmcnt(0)")
    e.stamp()
    srd(e, 16, 4, 5, 2048 * 896)
    srd(e, 24, 12, 13, WS_SIZE)
    e("s_lshl_b32 s38, s29, 3")
    e("s_add_u32 s38, s38, s30")
    e("s_mul_i32 s38, s38, 7168")
    e("s_mul_i32 s39, s30, 7296")
    e(f"s_add_u32 s39, s39, {XB}")
    e("s_mov_b64 s[50:51], exec")
    e("s_mov_b32 exec_hi, 0x00ffffff")
    for it in range(8):
        e("s_mov_b32 m0, s39")
        e("s_add_u32 s39, s39, 912")
        e("buffer_load_dwordx4 v6, s[16:19], s38 offen lds")
        e("s_add_u32 s38, s38, 896")
    e("s_mov_b64 exec, s[50:51]")
    e("s_cmp_ge_u32 s30, 6")
    e("s_cbranch_scc1 K1_NOW")
    e("s_cmp_lt_u32 s32, 16")
    e("s_cselect_b32 s20, s6, s8")
    e("s_cselect_b32 s21, s7, s9")
    e("s_mov_b32 s36, 896")
    e("s_cselect_b32 s34, s36, 56")
    e("s_mov_b32 s36, 401408")
    e("s_cselect_b32 s22, s36, 25088")
    e("s_mul_i32 s35, s32, 56")
    e("s_cselect_b32 s35, s35, 0")
    e("s_cmp_eq_u32 s32, 17")
    e("s_cselect_b32 s20, s10, s20")
    e("s_cselect_b32 s21, s11, s21")
    e("s_and_b32 s21, s21, 0xffff")
    e("s_mov_b32 s23, 0x00020000")
    e("v_lshrrev_b32 v3, 2, v2")
    e("v_mul_lo_u32 v4, v3, s34")
    e("v_and_b32 v5, 3, v2")
    e("v_lshl_add_u32 v4, v5, 4, v4")
    e("v_add_u32 v4, s35, v4")
    e("s_and_b32 s36, s30, 1")
    e("s_mul_i32 s36, s36, 224")
    e("s_mul_i32 s38, s36, s34")
    e("s_mul_i32 s39, s31, 28672")
    e("s_lshl_b32 s40, s36, 6")
    e("s_add_u32 s39, s39, s40")
    e("s_lshl_b32 s37, s34, 4")
    for it in range(14):
        e("s_mov_b32 m0, s39")
        e("s_add_u32 s39, s39, 1024")
        e("buffer_load_dwordx4 v4, s[20:23], s38 offen lds")
        e("s_add_u32 s38, s38, s37")
    e.stamp()
    e("s_waitcnt vmcnt(14)")
    e("s_branch K1_LN")
    e.label("K1_NOW")
    e.stamp()
    e("s_waitcnt vmcnt(0)")
    e.label("K1_LN")
    e.stamp()
    e("v_lshrrev_b32 v7, 3, v2")
    e("s_movk_i32 s43, 912")
    e("v_mul_lo_u32 v7, v7, s43")
    e("v_and_b32 v8, 7, v2")
    e("v_lshl_add_u32 v7, v8, 4, v7")
    e("s_mul_i32 s39, s30, 7296")
    e(f"s_add_u32 s39, s39, {XB}")
    e("v_add_u32 v7, s39, v7")
    for i in range(7):
        e(f"ds_read_b128 {vr(64+4*i,4)}, v7 offset:{i*128}")
    e("s_waitcnt lgkmcnt(0)")
    for j in range(28):
        e(f"v_lshlrev_b32 v{128+2*j}, 16, v{64+j}")
        e(f"v_and_b32 v{129+2*j}, 0xffff0000, v{64+j}")
    e("v_pk_add_f32 v[52:53], v[128:129], v[130:131]")
    e("v_pk_mul_f32 v[54:55], v[128:129], v[128:129]")
    e("v_pk_fma_f32 v[54:55], v[130:131], v[130:131], v[54:55]")
    for j in range(2, 28):
        e(f"v_pk_add_f32 v[52:53], v[52:53], {vr(128+2*j,2)}")
        e(f"v_pk_fma_f32 v[54:55], {vr(128+2*j,2)}, {vr(128+2*j,2)}, v[54:55]")
    e("v_add_f32 v52, v52, v53")
    e("v_add_f32 v54, v54, v55")
    for ctrl in ("quad_perm:[1,0,3,2]", "quad_perm:[2,3,0,1]", "row_half_mirror"):
        e("s_nop 1")
        e(f"v_add_f32_dpp v52, v52, v52 {ctrl} row_mask:0xf bank_mask:0xf")
        e(f"v_add_f32_dpp v54, v54, v54 {ctrl} row_mask:0xf bank_mask:0xf")
    e(f"v_mul_f32 v52, {f2u(1.0/448):#x}, v52")
    e(f"v_mul_f32 v54, {f2u(1.0/448):#x}, v54")
    e("v_fma_f32 v54, -v52, v52, v54")
    e(f"v_add_f32 v54, {f2u(1e-5):#x}, v54")
    e("v_rsq_f32 v54, v54")
    e("s_nop 0")
    e("v_mul_f32 v52, v52, v54")
    e("v_sub_f32 v52, 0, v52")
    e("v_mov_b32 v53, v52")
    e("v_mov_b32 v55, v54")
    for j in range(28):
        e(f"v_pk_fma_f32 {vr(128+2*j,2)}, {vr(128+2*j,2)}, v[54:55], v[52:53]")
    for j in range(28):
        e(f"v_cvt_pk_bf16_f32 v{64+j}, v{128+2*j}, v{129+2*j}")
    for i in range(7):
        e(f"ds_write_b128 v7, {vr(64+4*i,4)} offset:{i*128}")
    e("s_waitcnt lgkmcnt(0) vmcnt(0)")
    e("s_barrier")
    e.stamp()
    e("s_cmp_ge_u32 s30, 6")
    e("s_cbranch_scc1 K1_END")
    e("s_cmp_ge_u32 s30, 3")
    e("s_cselect_b32 s39, 1, 0")
    e("s_mul_i32 s40, s39, 3")
    e("s_sub_u32 s40, s30, s40")
    e("s_lshl_b32 s41, s29, 1")
    e("s_add_u32 s41, s41, s39")
    e("v_and_b32 v8, 31, v2")
    e("s_lshl_b32 s42, s39, 5")
    e("v_add_u32 v8, s42, v8")
    e("v_mul_lo_u32 v8, v8, s43")
    e("v_lshrrev_b32 v9, 5, v2")
    e("v_lshl_add_u32 v8, v9, 4, v8")
    e(f"v_add_u32 v8, {XB}, v8")
    e("v_lshrrev_b32 v10, 4, v2")
    e("v_and_b32 v11, 15, v2")
    e("v_lshrrev_b32 v12, 1, v10")
    e("v_lshlrev_b32 v12, 3, v12")
    e("v_lshrrev_b32 v13, 2, v11")
    e("v_add_u32 v12, v12, v13")
    e("v_lshlrev_b32 v12, 6, v12")
    e("v_and_b32 v13, 1, v10")
    e("v_lshl_add_u32 v12, v13, 5, v12")
    e("v_and_b32 v13, 3, v11")
    e("v_lshl_add_u32 v12, v13, 3, v12")
    e("s_mul_i32 s44, s40, 28672")
    e("v_add_u32 v12, s44, v12")
    e("s_mul_i32 s45, s28, 3")
    e("s_add_u32 s45, s45, s40")
    e("s_cmp_eq_u32 s45, 17")
    e("s_cbranch_scc1 K1_V")

    def mainloop(isv):
        first = True
        for b in range(4):
            for i in range(7):
                kk = b * 7 + i
                e(f"ds_read_b128 {vr(128+4*kk,4)}, v8 offset:{kk*32}")
                e(f"ds_read_b64_tr_b16 {vr(64+4*kk-(0),2) if False else vr(16+4*kk,2)}, v12 offset:{kk*1024}")
                e(f"ds_read_b64_tr_b16 {vr(18+4*kk,2)}, v12 offset:{kk*1024+256}")
        for b in range(4):
            e(f"s_waitcnt lgkmcnt({min(15, (3-b)*21)})") if (3 - b) * 21 <= 15 else None
            if b == 0:
                pass
        return

    def mainloop2(isv):
        for b in range(4):
            for i in range(7):
                kk = b * 7 + i
                e(f"ds_read_b128 {vr(128+4*kk,4)}, v8 offset:{kk*32}")
                e(f"ds_read_b64_tr_b16 {vr(16+4*kk,2)}, v12 offset:{kk*1024}")
                e(f"ds_read_b64_tr_b16 {vr(18+4*kk,2)}, v12 offset:{kk*1024+256}")
            if b >= 1:
                e("s_waitcnt lgkmcnt(15)")
                e("s_waitcnt lgkmcnt(15)")
        return

    def mainloop3(isv):
        steps = list(range(28))
        nb = 4
        issued = 0
        first = True

        def issue(kk):
            e(f"ds_read_b128 {vr(128+4*kk,4)}, v8 offset:{kk*32}")
            e(f"ds_read_b64_tr_b16 {vr(16+4*kk,2)}, v12 offset:{kk*1024}")
            e(f"ds_read_b64_tr_b16 {vr(18+4*kk,2)}, v12 offset:{kk*1024+256}")
        for kk in range(nb):
            issue(kk)
        for kk in steps:
            if kk + nb < 28:
                issue(kk + nb)
                e(f"s_waitcnt lgkmcnt({3*nb})")
            else:
                e(f"s_waitcnt lgkmcnt({3*(27-kk)})")
            w = vr(16 + 4 * kk, 4)
            x = vr(128 + 4 * kk, 4)
            c = "0" if kk == 0 else "v[240:255]"
            if isv:
                e(f"{MFMA} v[240:255], {x}, {w}, {c}")
            else:
                e(f"{MFMA} v[240:255], {w}, {x}, {c}")
        e("s_nop 7")
        e("s_nop 7")

    mainloop3(False)
    e.stamp()
    e("s_cmp_lt_u32 s45, 16")
    e(f"s_cselect_b32 s46, {f2u(QSCALE):#x}, 1.0")
    e("v_cmp_eq_u32 vcc, 1, v9")
    for r in range(16):
        e(f"v_mul_f32 v{240+r}, s46, v{240+r}")
    e("v_mov_b32 v3, 0")
    for r in range(12, 16):
        e(f"v_cndmask_b32 v{240+r}, v{240+r}, v3, vcc")
    for j in range(8):
        e(f"v_cvt_pk_bf16_f32 v{64+j}, v{240+2*j}, v{241+2*j}")
    e("s_lshl_b32 s47, s45, 6")
    e("s_add_u32 s47, s47, s41")
    e("s_lshl_b32 s47, s47, 11")
    e(f"s_add_u32 s47, s47, {QF_OFF}")
    e("s_lshl_b32 s48, s41, 12")
    e(f"s_add_u32 s48, s48, {KV_OFF}")
    e("s_cmp_lt_u32 s45, 16")
    e("s_cselect_b32 s47, s47, s48")
    e("buffer_store_dwordx4 v[64:67], v6, s[24:27], s47 offen")
    e("buffer_store_dwordx4 v[68:71], v6, s[24:27], s47 offen offset:1024")
    e("s_cmp_eq_u32 s45, 16")
    e("s_cbranch_scc0 K1_NOKN")
    e("v_pk_mul_f32 v[4:5], v[240:241], v[240:241]")
    for j in range(1, 8):
        e(f"v_pk_fma_f32 v[4:5], {vr(240+2*j,2)}, {vr(240+2*j,2)}, v[4:5]")
    e("v_add_f32 v4, v4, v5")
    e("v_mov_b32 v5, v4")
    e("s_nop 1")
    e("v_permlane32_swap_b32 v4, v5")
    e("v_add_f32 v4, v4, v5")
    for ctrl in ("row_shr:1", "row_shr:2", "row_shr:4", "row_shr:8", "row_bcast:15 row_mask:0xa", "row_bcast:31 row_mask:0xc"):
        e("s_nop 1")
        if "row_mask" in ctrl:
            e(f"v_max_f32_dpp v4, v4, v4 {ctrl} bank_mask:0xf")
        else:
            e(f"v_max_f32_dpp v4, v4, v4 {ctrl} row_mask:0xf bank_mask:0xf")
    e("s_nop 1")
    e("v_readlane_b32 s49, v4, 63")
    e("s_lshl_b32 s48, s41, 2")
    e(f"s_add_u32 s48, s48, {KN_OFF}")
    e("v_mov_b32 v5, 0")
    e("v_mov_b32 v4, s49")
    e("buffer_store_dword v4, v5, s[24:27], s48 offen")
    e.label("K1_NOKN")
    e.stamp()
    e.dump(0, 24)
    e("s_endpgm")
    e.label("K1_V")
    mainloop3(True)
    e("v_and_b32 v3, 31, v2")
    e("v_cmp_eq_u32 vcc, 28, v3")
    e("v_cmp_lt_u32 s[52:53], 28, v3")
    e("v_mov_b32 v4, 1.0")
    e("v_mov_b32 v5, 0")
    for r in range(16):
        e(f"v_cndmask_b32 v{240+r}, v{240+r}, v4, vcc")
    for r in range(16):
        e(f"v_cndmask_b32 v{240+r}, v{240+r}, v5, s[52:53]")
    for j in range(8):
        e(f"v_cvt_pk_bf16_f32 v{64+j}, v{240+2*j}, v{241+2*j}")
    e("s_lshl_b32 s48, s41, 12")
    e(f"s_add_u32 s48, s48, {KV_OFF + 2048}")
    e("buffer_store_dwordx4 v[64:67], v6, s[24:27], s48 offen")
    e("buffer_store_dwordx4 v[68:71], v6, s[24:27], s48 offen offset:1024")
    e.label("K1_END")
    e("s_endpgm")
    return e.text(), desc("k1_kernel", 256), "; @launch kernel=k1_kernel grid=(192,1,1) block=(512,1,1) lds=144384"


def k2():
    e = E()
    header(e, "k2_kernel")
    T_RESC = 8.0
    Q0, Q1 = 16, 20
    NEGM = 24
    S = [40, 56]
    O = 72
    P = 88
    KF = [96, 104]
    VF = [112, 120]
    e("s_cmp_ge_u32 s2, 256")
    e("s_cbranch_scc1 K2_END")
    e("s_load_dwordx2 s[4:5], s[0:1], 96")
    e("v_lshrrev_b32 v1, 6, v0")
    e("v_and_b32 v2, 63, v0")
    e("v_readfirstlane_b32 s30, v1")
    e("s_lshr_b32 s31, s2, 4")
    e("s_and_b32 s32, s2, 15")
    e("s_lshl_b32 s33, s32, 2")
    e("s_add_u32 s33, s33, s30")
    e("v_lshlrev_b32 v1, 4, v2")
    e("s_waitcnt lgkmcnt(0)")
    e.stamp()
    srd(e, 8, 4, 5, WS_SIZE)
    e("s_cmp_eq_u32 s30, 4")
    e("s_cbranch_scc1 K2_LOADER")
    e("s_lshl_b32 s34, s31, 6")
    e("s_add_u32 s34, s34, s33")
    e("s_lshl_b32 s34, s34, 11")
    e(f"s_add_u32 s34, s34, {QF_OFF}")
    e(f"buffer_load_dwordx4 {vr(Q0,4)}, v1, s[8:11], s34 offen")
    e(f"buffer_load_dwordx4 {vr(Q1,4)}, v1, s[8:11], s34 offen offset:1024")
    e("v_lshrrev_b32 v4, 2, v1")
    e(f"s_mov_b32 s36, {KN_OFF}")
    e("buffer_load_dword v5, v4, s[8:11], s36 offen")
    for r in range(16):
        e(f"v_mov_b32 v{O+r}, 0")
        e(f"v_mov_b32 v{NEGM+r}, 0")
    e("v_mov_b32 v2, v1")
    e("v_add_u32 v3, 32768, v1")
    e.stamp()
    e("s_waitcnt vmcnt(0)")
    e("s_barrier")
    e.stamp()
    e(f"ds_read_b128 {vr(KF[0],4)}, v2 offset:0")
    e(f"ds_read_b128 {vr(KF[0]+4,4)}, v2 offset:1024")
    e(f"ds_read_b128 {vr(KF[1],4)}, v2 offset:4096")
    e(f"ds_read_b128 {vr(KF[1]+4,4)}, v2 offset:5120")
    e(f"ds_read_b128 {vr(VF[0],4)}, v2 offset:2048")
    e(f"ds_read_b128 {vr(VF[0]+4,4)}, v2 offset:3072")
    for ctrl in ("row_shr:1", "row_shr:2", "row_shr:4", "row_shr:8", "row_bcast:15 row_mask:0xa", "row_bcast:31 row_mask:0xc"):
        e("s_nop 1")
        if "row_mask" in ctrl:
            e(f"v_max_f32_dpp v5, v5, v5 {ctrl} bank_mask:0xf")
        else:
            e(f"v_max_f32_dpp v5, v5, v5 {ctrl} row_mask:0xf bank_mask:0xf")
    e("v_mov_b32 v6, 0")
    for j in range(8):
        e(f"v_lshlrev_b32 v7, 16, v{Q0+j}")
        e(f"v_and_b32 v8, 0xffff0000, v{Q0+j}")
        e("v_fmac_f32 v6, v7, v7")
        e("v_fmac_f32 v6, v8, v8")
    e("v_readlane_b32 s37, v5, 63")
    e("v_mov_b32 v7, v6")
    e("s_nop 1")
    e("v_permlane32_swap_b32 v6, v7")
    e("v_add_f32 v6, v6, v7")
    e("v_mul_f32 v6, s37, v6")
    e(f"v_mul_f32 v6, {f2u(1.05):#x}, v6")
    e(f"s_mov_b32 s38, {f2u(48.0*48.0):#x}")
    e("v_cmp_ge_f32 vcc, s38, v6")
    e("v_sqrt_f32 v7, v6")
    e("s_waitcnt lgkmcnt(0)")
    e("s_cmp_eq_u64 vcc, exec")
    e("s_cbranch_scc0 K2_SAFE")
    e(f"v_mul_f32 v7, {f2u(-1.001):#x}, v7")
    for r in range(16):
        e(f"v_mov_b32 v{NEGM+r}, v7")
    e("s_nop 1")
    e(f"{MFMA} {vr(S[0],16)}, {vr(KF[0],4)}, {vr(Q0,4)}, {vr(NEGM,16)}")
    e(f"{MFMA} {vr(S[0],16)}, {vr(KF[0]+4,4)}, {vr(Q1,4)}, {vr(S[0],16)}")
    e("s_nop 7")
    e("s_nop 7")
    for r in range(4):
        e(f"v_exp_f32 v{S[0]+r}, v{S[0]+r}")
    e("s_mov_b32 s44, 0")
    e("s_branch K2F_LOOP")
    e.label("K2_SAFE")
    e(f"{MFMA} {vr(S[0],16)}, {vr(KF[0],4)}, {vr(Q0,4)}, 0")
    e(f"{MFMA} {vr(S[0],16)}, {vr(KF[0]+4,4)}, {vr(Q1,4)}, {vr(S[0],16)}")
    e("s_nop 7")
    e("s_nop 7")

    def maxtree(sb):
        e(f"v_max3_f32 v4, v{sb}, v{sb+1}, v{sb+2}")
        e(f"v_max3_f32 v5, v{sb+3}, v{sb+4}, v{sb+5}")
        e(f"v_max3_f32 v6, v{sb+6}, v{sb+7}, v{sb+8}")
        e(f"v_max3_f32 v7, v{sb+9}, v{sb+10}, v{sb+11}")
        e(f"v_max3_f32 v4, v4, v{sb+12}, v{sb+13}")
        e(f"v_max3_f32 v5, v5, v{sb+14}, v{sb+15}")
        e("v_max3_f32 v4, v4, v6, v7")
        e("v_max_f32 v4, v4, v5")

    def rescale(sb, first):
        e("s_nop 7")
        e("s_nop 7")
        if not first:
            e("v_mov_b32 v4, v6")
        e("v_mov_b32 v5, v4")
        e("s_nop 1")
        e("v_permlane32_swap_b32 v4, v5")
        e("v_max_f32 v4, v4, v5")
        if not first:
            e("v_max_f32 v4, 0, v4")
            e("v_sub_f32 v5, 0, v4")
            e("v_exp_f32 v5, v5")
            e("s_nop 0")
            for r in range(16):
                e(f"v_mul_f32 v{O+r}, v5, v{O+r}")
        for r in range(16):
            e(f"v_sub_f32 v{sb+r}, v{sb+r}, v4")
        for r in range(16):
            e(f"v_sub_f32 v{NEGM+r}, v{NEGM+r}, v4")

    maxtree(S[0])
    rescale(S[0], True)
    for r in range(4):
        e(f"v_exp_f32 v{S[0]+r}, v{S[0]+r}")
    e("s_mov_b32 s44, 0")
    e(f"s_mov_b32 s45, {f2u(T_RESC):#x}")

    rare = []

    def tile(i, uid, last_chunk, fast=False):
        p = i & 1
        sc, sn = S[p], S[1 - p]
        has_nxt = not (last_chunk and i == 7)
        has_k2 = not (last_chunk and i >= 6)
        if i == 6 and not last_chunk:
            e("s_barrier")
        def E_(r):
            e(f"v_exp_f32 v{sc+r}, v{sc+r}")

        def C_(j):
            e(f"v_cvt_pk_bf16_f32 v{P+j}, v{sc+2*j}, v{sc+2*j+1}")
        if has_nxt:
            e(f"{MFMA} {vr(sn,16)}, {vr(KF[1-p],4)}, {vr(Q0,4)}, {vr(NEGM,16)}")
        if has_k2 and "nolds" not in EXP:
            t2 = i + 2
            a, o = ("v2", t2 * 4096) if t2 < 8 else ("v3", (t2 - 8) * 4096)
            e(f"ds_read_b128 {vr(KF[p],4)}, {a} offset:{o}")
            e(f"ds_read_b128 {vr(KF[p]+4,4)}, {a} offset:{o+1024}")
        for r in range(4, 8):
            E_(r)
        if has_nxt:
            e(f"{MFMA} {vr(sn,16)}, {vr(KF[1-p]+4,4)}, {vr(Q1,4)}, {vr(sn,16)}")
        if has_nxt and "nolds" not in EXP:
            t1 = i + 1
            a, o = ("v2", t1 * 4096) if t1 < 8 else ("v3", (t1 - 8) * 4096)
            e(f"ds_read_b128 {vr(VF[1-p],4)}, {a} offset:{o+2048}")
            e(f"ds_read_b128 {vr(VF[1-p]+4,4)}, {a} offset:{o+3072}")
        E_(8)
        for j in range(4):
            C_(j)
        E_(9)
        E_(10)
        e(f"{MFMA} {vr(O,16)}, {vr(VF[p],4)}, {vr(P,4)}, {vr(O,16)}")
        X = []
        if has_nxt and "nomax" not in EXP and not fast:
            X = [f"v_max3_f32 v4, v{sn}, v{sn+1}, v{sn+2}",
                 f"v_max3_f32 v5, v{sn+3}, v{sn+4}, v{sn+5}",
                 f"v_max3_f32 v6, v{sn+6}, v{sn+7}, v{sn+8}",
                 f"v_max3_f32 v7, v{sn+9}, v{sn+10}, v{sn+11}",
                 f"v_max3_f32 v4, v4, v{sn+12}, v{sn+13}",
                 f"v_max3_f32 v5, v5, v{sn+14}, v{sn+15}",
                 "v_max3_f32 v6, v6, v7, v4",
                 "v_max_f32 v6, v6, v5",
                 "v_cmp_lt_f32 vcc, s45, v6"]

        def X_(n):
            for _ in range(n):
                if X:
                    e(X.pop(0))
        E_(11)
        E_(12)
        X_(2)
        E_(13)
        X_(2)
        E_(14)
        X_(2)
        E_(15)
        X_(1)
        if not X:
            e("s_nop 0")
        C_(4)
        X_(1)
        C_(5)
        X_(1)
        C_(6)
        C_(7)
        e("s_nop 1")
        e(f"{MFMA} {vr(O,16)}, {vr(VF[p]+4,4)}, {vr(P+4,4)}, {vr(O,16)}")
        if has_nxt:
            e("s_waitcnt lgkmcnt(0)")
            if "nomax" not in EXP and not fast:
                e(f"s_cbranch_vccnz K2_R_{uid}")
                e.label(f"K2_B_{uid}")
                rare.append((f"K2_R_{uid}", f"K2_B_{uid}", sn))
            for r in range(4):
                e(f"v_exp_f32 v{sn+r}, v{sn+r}")

    for fast in (False, True):
        L = "K2F" if fast else "K2"
        e.label(f"{L}_LOOP")
        for i in range(8):
            tile(i, f"{L}a{i}", False, fast)
        e("v_mov_b32 v2, v3")
        e("v_add_u32 v3, 32768, v3")
        e("v_and_b32 v3, 0x1ffff, v3")
        e("s_add_u32 s44, s44, 1")
        e("s_cmp_lt_u32 s44, 7")
        e(f"s_cbranch_scc1 {L}_LOOP")
        for i in range(8):
            tile(i, f"{L}b{i}", True, fast)
        if not fast:
            e("s_branch K2_EPI")
    e.label("K2_EPI")
    e.stamp()
    e("s_nop 7")
    e("s_nop 7")
    e(f"v_mov_b32 v4, v{O+12}")
    e(f"v_mov_b32 v5, v{O+12}")
    e("s_nop 1")
    e("v_permlane32_swap_b32 v4, v5")
    e("v_rcp_f32 v5, v5")
    e("v_lshrrev_b32 v6, 9, v1")
    e("v_cmp_eq_u32 vcc, 1, v6")
    for r in range(16):
        e(f"v_mul_f32 v{O+r}, v5, v{O+r}")
    e("v_mov_b32 v7, 0")
    for r in range(12, 16):
        e(f"v_cndmask_b32 v{O+r}, v{O+r}, v7, vcc")
    for j in range(8):
        e(f"v_cvt_pk_bf16_f32 v{P+j}, v{O+2*j}, v{O+2*j+1}")
    e("s_lshl_b32 s34, s33, 4")
    e("s_add_u32 s34, s34, s31")
    e("s_lshl_b32 s34, s34, 11")
    e(f"s_add_u32 s34, s34, {OF_OFF}")
    e(f"buffer_store_dwordx4 {vr(P,4)}, v1, s[8:11], s34 offen")
    e(f"buffer_store_dwordx4 {vr(P+4,4)}, v1, s[8:11], s34 offen offset:1024")
    e.stamp()
    e.dump(1, 8)
    e("s_endpgm")
    e.label("K2_LOADER")

    def dma32(c):
        for g in range(8):
            e(f"s_mov_b32 m0, {(c % 4)*32768 + g*4096}")
            e(f"s_mov_b32 s40, {KV_OFF + c*32768 + g*4096}")
            for i in range(4):
                e(f"buffer_load_dwordx4 v1, s[8:11], s40 offen offset:{i*1024} lds")
    e("s_load_dwordx2 s[12:13], s[0:1], 32")
    e("s_load_dwordx2 s[14:15], s[0:1], 48")
    e("s_load_dwordx2 s[16:17], s[0:1], 64")
    dma32(0)
    e("s_waitcnt lgkmcnt(0)")
    srd(e, 20, 12, 13, 401408)
    srd(e, 24, 14, 15, 7340032)
    srd(e, 28, 16, 17, 7340032)
    e("s_lshl_b32 s46, s2, 11")
    e("s_mul_i32 s47, s2, 28672")
    pf = [(20, 46, 0), (20, 46, 1024)] + [(24, 47, i * 1024) for i in range(28)] + [(28, 47, i * 1024) for i in range(28)]

    def prefetch(n):
        for _ in range(n):
            if not pf:
                return 0
            sr, so, off = pf.pop(0)
            if off >= 4096:
                e(f"s_add_u32 s48, s{so}, {off & ~4095}")
                e(f"buffer_load_dwordx4 v[8:11], v1, s[{sr}:{sr+3}], s48 offen offset:{off & 4095}")
            else:
                e(f"buffer_load_dwordx4 v[8:11], v1, s[{sr}:{sr+3}], s{so} offen offset:{off}")
        return n
    e("s_waitcnt vmcnt(0)")
    e("s_barrier")
    dma32(1)
    dma32(2)
    npf_prev2, npf_prev1 = 0, 0
    for c in range(7):
        if c <= 5:
            e(f"s_waitcnt vmcnt({npf_prev2 + 32 + npf_prev1})")
        else:
            e(f"s_waitcnt vmcnt({npf_prev2 + npf_prev1})")
        e("s_barrier")
        if c + 3 <= 7:
            dma32(c + 3)
        n0 = len(pf)
        prefetch(9)
        npf = n0 - len(pf)
        npf_prev2, npf_prev1 = npf_prev1, npf
    e("s_endpgm")
    for (rl, bl, sn) in rare:
        e.label(rl)
        rescale(sn, False)
        e(f"s_branch {bl}")
    e.label("K2_END")
    e("s_endpgm")
    return e.text(), desc("k2_kernel", 128), "; @launch kernel=k2_kernel grid=(256,1,1) block=(320,1,1) lds=131072"


def tr_addr(e, vl, va0, va1, vt0, vt1, natural):
    e(f"v_lshrrev_b32 v{vt0}, 5, v{vl}")
    e(f"v_lshlrev_b32 v{vt0}, {3 if natural else 2}, v{vt0}")
    e(f"v_bfe_u32 v{vt1}, v{vl}, 2, 2")
    e(f"v_add_u32 v{vt0}, v{vt0}, v{vt1}")
    e(f"v_lshlrev_b32 v{va0}, 7, v{vt0}")
    e(f"v_bfe_u32 v{vt1}, v{vl}, 4, 1")
    e(f"v_lshl_add_u32 v{va0}, v{vt1}, 5, v{va0}")
    e(f"v_and_b32 v{vt1}, 3, v{vl}")
    e(f"v_lshl_add_u32 v{va0}, v{vt1}, 3, v{va0}")
    e(f"v_bfe_u32 v{vt1}, v{vl}, 3, 1")
    e(f"v_lshlrev_b32 v{vt1}, 6, v{vt1}")
    e(f"v_xor_b32 v{va0}, v{va0}, v{vt1}")
    e(f"v_xor_b32 v{va1}, 64, v{va0}")


def dma_voff(e, vl, vd, vt, pitch_sreg):
    e(f"v_lshrrev_b32 v{vt}, 3, v{vl}")
    e(f"v_mul_lo_u32 v{vd}, v{vt}, s{pitch_sreg}")
    e(f"v_bfe_u32 v{vt}, v{vl}, 4, 1")
    e(f"v_lshlrev_b32 v{vt}, 2, v{vt}")
    e(f"v_xor_b32 v{vt}, v{vt}, v{vl}")
    e(f"v_and_b32 v{vt}, 7, v{vt}")
    e(f"v_lshl_add_u32 v{vd}, v{vt}, 4, v{vd}")


def k3():
    e = E()
    header(e, "k3_kernel")
    RING = 6
    RSZ = RING * 2048
    RBASE = 32768
    XR = RBASE + 7 * RSZ
    STAT = XR + 32 * 912
    e("s_cmp_ge_u32 s2, 64")
    e("s_cbranch_scc1 K3_END")
    e("s_load_dwordx2 s[4:5], s[0:1], 0")
    e("s_load_dwordx2 s[6:7], s[0:1], 32")
    e("s_load_dwordx2 s[12:13], s[0:1], 96")
    e("v_lshrrev_b32 v1, 6, v0")
    e("v_and_b32 v2, 63, v0")
    e("v_readfirstlane_b32 s30, v1")
    e("s_movk_i32 s31, 896")
    e("v_lshlrev_b32 v1, 4, v2")
    dma_voff(e, 2, 3, 4, 31)
    tr_addr(e, 2, 5, 6, 7, 8, False)
    e(f"s_mul_i32 s32, s30, {RSZ}")
    e(f"s_add_u32 s32, s32, {RBASE}")
    e("v_add_u32 v5, s32, v5")
    e("v_add_u32 v6, s32, v6")
    e("s_lshl_b32 s33, s30, 7")
    e("v_add_u32 v3, s33, v3")
    e("s_waitcnt lgkmcnt(0)")
    e.stamp()
    srd(e, 16, 4, 5, 2048 * 896)
    srd(e, 20, 6, 7, 401408)
    srd(e, 24, 12, 13, WS_SIZE)
    e.vm = []

    def wdma(k):
        head, t = k >> 1, k & 1
        rb = head * 28 + 16 * t
        slot = k % RING
        e(f"s_add_u32 s40, s32, {slot*2048}")
        e("s_mov_b32 m0, s40")
        e(f"s_mov_b32 s41, {rb*896}")
        e.vmop("buffer_load_dwordx4 v3, s[20:23], s41 offen lds", f"W{k}")
        e(f"s_add_u32 s40, s32, {slot*2048+1024}")
        e("s_mov_b32 m0, s40")
        e(f"s_mov_b32 s41, {(rb+8)*896}")
        e.vmop("buffer_load_dwordx4 v3, s[20:23], s41 offen lds", f"W{k}")

    DW = 5
    e("s_lshl_b32 s34, s2, 15")
    e(f"s_add_u32 s34, s34, {OF_OFF}")
    e("s_lshl_b32 s36, s30, 10")
    for it in range(5):
        if it == 4:
            e("s_min_u32 s36, s36, 31744")
        e("s_add_u32 s37, s34, s36")
        e("s_mov_b32 m0, s36")
        e("s_nop 0")
        e.vmop("buffer_load_dwordx4 v1, s[24:27], s37 offen lds", "OF")
        e("s_add_u32 s36, s36, 7168")
    for k in range(DW):
        wdma(k)
    e("s_lshl_b32 s38, s2, 5")
    e("s_add_u32 s38, s38, s30")
    e("s_mul_i32 s38, s38, 896")
    e("s_mul_i32 s39, s30, 912")
    e(f"s_add_u32 s39, s39, {XR}")
    e("s_mov_b64 s[50:51], exec")
    e("s_mov_b32 exec_hi, 0x00ffffff")
    for it in range(5):
        if it == 4:
            e("s_cmp_ge_u32 s30, 4")
            e("s_cselect_b32 s46, 6272, 0")
            e("s_sub_u32 s38, s38, s46")
            e("s_cselect_b32 s46, 6384, 0")
            e("s_sub_u32 s39, s39, s46")
        e("s_mov_b32 m0, s39")
        e(f"s_add_u32 s39, s39, {7*912}")
        e.vmop("buffer_load_dwordx4 v1, s[16:19], s38 offen lds", "X")
        e(f"s_add_u32 s38, s38, {7*896}")
    e("s_mov_b64 exec, s[50:51]")
    ACC = [32, 48]
    e.stamp()
    e.vmwait("OF")
    e("s_barrier")
    e.stamp()
    WF = [[64, 68], [72, 76]]
    OFR = [80, 84]

    def rd(k):
        p = k & 1
        slot = k % RING
        for nt in range(2):
            a = "v5" if nt == 0 else "v6"
            e(f"ds_read_b64_tr_b16 {vr(WF[p][nt],2)}, {a} offset:{slot*2048}")
            e(f"ds_read_b64_tr_b16 {vr(WF[p][nt]+2,2)}, {a} offset:{slot*2048+1024}")
        e(f"ds_read_b128 {vr(OFR[p],4)}, v1 offset:{k*1024}")

    e.vmwait("W0")
    rd(0)
    for k in range(32):
        if k + DW < 32:
            wdma(k + DW)
        if k + 1 < 32:
            e.vmwait(f"W{k+1}")
            e("s_waitcnt lgkmcnt(0)")
            rd(k + 1)
        else:
            e("s_waitcnt lgkmcnt(0)")
        p = k & 1
        for nt in range(2):
            c = "0" if k == 0 else vr(ACC[nt], 16)
            e(f"{MFMA} {vr(ACC[nt],16)}, {vr(WF[p][nt],4)}, {vr(OFR[p],4)}, {c}")
    e.stamp()
    e("s_waitcnt vmcnt(0)")
    e("s_barrier")
    e.stamp()
    e("v_and_b32 v9, 31, v2")
    e("s_movk_i32 s42, 912")
    e("v_mul_lo_u32 v9, v9, s42")
    e("v_lshrrev_b32 v10, 5, v2")
    e("v_lshl_add_u32 v9, v10, 3, v9")
    e("v_add_u32 v9, s33, v9")
    e(f"v_add_u32 v9, {XR}, v9")
    for nt in range(2):
        for q in range(4):
            e(f"ds_read_b64 {vr(96+nt*8+q*2,2)}, v9 offset:{nt*64+q*16}")
    for j in range(16):
        e(f"v_cvt_pk_bf16_f32 v{112+j}, v{32+2*j}, v{33+2*j}")
    e("s_waitcnt lgkmcnt(0)")
    for j in range(16):
        e(f"v_lshlrev_b32 v{32+2*j}, 16, v{112+j}")
        e(f"v_and_b32 v{33+2*j}, 0xffff0000, v{112+j}")
        e(f"v_lshlrev_b32 v{64+2*j}, 16, v{96+j}")
        e(f"v_and_b32 v{65+2*j}, 0xffff0000, v{96+j}")
    for j in range(16):
        e(f"v_pk_add_f32 {vr(32+2*j,2)}, {vr(32+2*j,2)}, {vr(64+2*j,2)}")
    for j in range(16):
        e(f"v_cvt_pk_bf16_f32 v{112+j}, v{32+2*j}, v{33+2*j}")
    e("s_mul_i32 s43, s2, 14")
    e("s_lshl_b32 s44, s30, 1")
    e("s_add_u32 s43, s43, s44")
    e("s_lshl_b32 s43, s43, 11")
    e(f"s_add_u32 s43, s43, {H_OFF}")
    for i in range(4):
        e(f"buffer_store_dwordx4 {vr(112+4*i,4)}, v1, s[24:27], s43 offen offset:{i*1024}")
    for j in range(16):
        e(f"v_lshlrev_b32 v{32+2*j}, 16, v{112+j}")
        e(f"v_and_b32 v{33+2*j}, 0xffff0000, v{112+j}")
    e("v_pk_add_f32 v[12:13], v[32:33], v[34:35]")
    e("v_pk_mul_f32 v[16:17], v[32:33], v[32:33]")
    e("v_pk_fma_f32 v[16:17], v[34:35], v[34:35], v[16:17]")
    for j in range(2, 16):
        e(f"v_pk_add_f32 v[12:13], v[12:13], {vr(32+2*j,2)}")
        e(f"v_pk_fma_f32 v[16:17], {vr(32+2*j,2)}, {vr(32+2*j,2)}, v[16:17]")
    e("v_add_f32 v12, v12, v13")
    e("v_add_f32 v16, v16, v17")
    e("v_mov_b32 v13, v12")
    e("v_mov_b32 v17, v16")
    e("s_nop 1")
    e("v_permlane32_swap_b32 v12, v13")
    e("v_permlane32_swap_b32 v16, v17")
    e("v_add_f32 v12, v12, v13")
    e("v_add_f32 v13, v16, v17")
    e("v_and_b32 v14, 31, v2")
    e("v_lshlrev_b32 v14, 3, v14")
    e(f"v_add_u32 v14, {STAT}, v14")
    e("s_lshl_b32 s46, s30, 8")
    e("v_add_u32 v15, s46, v14")
    e.stamp()
    e("ds_write_b64 v15, v[12:13]")
    e("s_waitcnt lgkmcnt(0)")
    e("s_barrier")
    e.stamp()
    for w in range(7):
        e(f"ds_read_b64 {vr(16+2*w,2)}, v14 offset:{w*256}")
    e("s_waitcnt lgkmcnt(0)")
    e("v_pk_add_f32 v[12:13], v[16:17], v[18:19]")
    for w in range(2, 7):
        e(f"v_pk_add_f32 v[12:13], v[12:13], {vr(16+2*w,2)}")
    e(f"v_mul_f32 v12, {f2u(1.0/448):#x}, v12")
    e(f"v_mul_f32 v13, {f2u(1.0/448):#x}, v13")
    e("v_fma_f32 v13, -v12, v12, v13")
    e("v_max_f32 v13, 0, v13")
    e(f"v_add_f32 v16, {f2u(1e-5):#x}, v13")
    e("v_rsq_f32 v16, v16")
    e("s_nop 0")
    e("v_mul_f32 v13, v13, v16")
    e("v_mul_f32 v13, v13, v16")
    e(f"v_add_f32 v13, {f2u(1e-5):#x}, v13")
    e("v_rsq_f32 v13, v13")
    e("s_nop 0")
    e("v_mul_f32 v16, v16, v13")
    e("v_mul_f32 v12, v12, v16")
    e("v_sub_f32 v12, 0, v12")
    e("v_mov_b32 v13, v12")
    e("v_mov_b32 v17, v16")
    for j in range(16):
        e(f"v_pk_fma_f32 {vr(32+2*j,2)}, {vr(32+2*j,2)}, v[16:17], v[12:13]")
    for j in range(16):
        e(f"v_cvt_pk_bf16_f32 v{112+j}, v{32+2*j}, v{33+2*j}")
    e("v_and_b32 v14, 31, v2")
    e("s_movk_i32 s42, 968")
    e("v_mul_lo_u32 v14, v14, s42")
    e("v_lshl_add_u32 v14, v10, 3, v14")
    e("v_add_u32 v14, s33, v14")
    for nt in range(2):
        for q in range(4):
            e(f"ds_write_b64 v14, {vr(112+nt*8+q*2,2)} offset:{nt*64+q*16}")
    e.stamp()
    e("s_waitcnt lgkmcnt(0)")
    e("s_barrier")
    e.stamp()
    e("v_lshrrev_b32 v15, 5, v2")
    e("v_lshlrev_b32 v15, 3, v15")
    e("v_bfe_u32 v16, v2, 2, 2")
    e("v_add_u32 v15, v15, v16")
    e("v_mul_lo_u32 v15, v15, s42")
    e("v_bfe_u32 v16, v2, 4, 1")
    e("v_lshl_add_u32 v15, v16, 5, v15")
    e("v_and_b32 v16, 3, v2")
    e("v_lshl_add_u32 v15, v16, 3, v15")
    e("v_add_u32 v15, s33, v15")
    for nt in range(2):
        for t in range(2):
            b = 64 + (nt * 2 + t) * 4
            e(f"ds_read_b64_tr_b16 {vr(b,2)}, v15 offset:{t*16*968+nt*64}")
            e(f"ds_read_b64_tr_b16 {vr(b+2,2)}, v15 offset:{t*16*968+nt*64+4*968}")
    e("s_waitcnt lgkmcnt(0)")
    e("s_lshl_b32 s43, s30, 18")
    e("s_lshl_b32 s44, s2, 11")
    e("s_add_u32 s43, s43, s44")
    e(f"s_add_u32 s43, s43, {HH_OFF}")
    e(f"s_add_u32 s45, s43, {128*1024}")
    for nt in range(2):
        for t in range(2):
            b = 64 + (nt * 2 + t) * 4
            e(f"buffer_store_dwordx4 {vr(b,4)}, v1, s[24:27], s{43 if nt==0 else 45} offen offset:{t*1024}")
    e.stamp()
    e.dump(2, 24)
    e.label("K3_END")
    e("s_endpgm")
    return e.text(), desc("k3_kernel", 128), f"; @launch kernel=k3_kernel grid=(64,1,1) block=(448,1,1) lds={STAT+2048}"


def kmlp(which):
    e = E()
    name = "k4_kernel" if which == 4 else "k5_kernel"
    L = "K4" if which == 4 else "K5"
    header(e, name)
    if which == 4:
        KS, NWG, NCB, pitch, wsize = 32, 200, 25, 3584, 2048 * 3584
        F_OFF, FSTEPS, natural = HH_OFF, 128, True
        woff, boff = 48, 56
    else:
        KS, NWG, NCB, pitch, wsize = 28, 224, 28, 4096, 1792 * 4096
        F_OFF, FSTEPS, natural = UF_OFF, 112, False
        woff, boff = 64, 72
    RING, DW, DF = 16, 12, 8
    e(f"s_cmp_ge_u32 s2, {NWG}")
    e(f"s_cbranch_scc1 {L}_END")
    e(f"s_load_dwordx2 s[6:7], s[0:1], {woff}")
    e(f"s_load_dwordx2 s[8:9], s[0:1], {boff}")
    e("s_load_dwordx2 s[10:11], s[0:1], 80")
    e("s_load_dwordx2 s[12:13], s[0:1], 96")
    e("v_lshrrev_b32 v1, 6, v0")
    e("v_and_b32 v2, 63, v0")
    e("v_readfirstlane_b32 s30, v1")
    e("s_and_b32 s33, s2, 7")
    e(f"s_mul_i32 s33, s33, {NCB}")
    e("s_lshr_b32 s34, s2, 3")
    e("s_add_u32 s34, s34, s33")
    if which == 4:
        e("s_cmp_ge_u32 s34, 196")
        e(f"s_cbranch_scc1 {L}_END")
    e("s_mov_b32 s33, 0x24924925")
    e("s_mul_hi_u32 s29, s34, s33")
    e("s_mul_i32 s33, s29, 7")
    e("s_sub_u32 s28, s34, s33")
    e(f"s_movk_i32 s31, {pitch}")
    e("v_lshlrev_b32 v1, 4, v2")
    dma_voff(e, 2, 3, 4, 31)
    tr_addr(e, 2, 5, 6, 7, 8, natural)
    e("s_lshl_b32 s32, s30, 15")
    e("v_add_u32 v5, s32, v5")
    e("v_add_u32 v6, s32, v6")
    e("s_lshl_b32 s33, s29, 7")
    e("v_add_u32 v3, s33, v3")
    e("s_waitcnt lgkmcnt(0)")
    e.stamp()
    srd(e, 20, 6, 7, wsize)
    srd(e, 24, 12, 13, WS_SIZE)
    e(f"s_mul_i32 s34, s30, {KS*16*pitch}")
    e(f"s_mul_i32 s35, s28, {2*FSTEPS*1024}")
    e(f"s_mul_i32 s36, s30, {KS*1024}")
    e("s_add_u32 s35, s35, s36")
    e(f"s_add_u32 s35, s35, {F_OFF}")
    e(f"s_add_u32 s36, s35, {FSTEPS*1024}")
    e("s_lshr_b32 s41, s30, 1")
    e("s_and_b32 s42, s30, 1")
    e("v_lshrrev_b32 v10, 5, v2")
    if which == 4:
        srd(e, 16, 8, 9, 1792 * 2)
        e("s_lshl_b32 s43, s29, 6")
        e("s_lshl_b32 s44, s41, 5")
        e("s_add_u32 s43, s43, s44")
        e("s_lshl_b32 s44, s43, 1")
        e("v_lshlrev_b32 v11, 3, v10")
        for q in range(4):
            e.vmop(f"buffer_load_dwordx2 {vr(16+2*q,2)}, v11, s[16:19], s44 offen offset:{q*16}", "EP")
    else:
        srd(e, 16, 8, 9, 2048 * 2)
        srd(e, 44, 10, 11, 2048 * 896)
        e("s_lshl_b32 s43, s29, 6")
        e("s_lshl_b32 s48, s41, 5")
        e("s_add_u32 s43, s43, s48")
        e("v_and_b32 v11, 31, v2")
        e("v_add_u32 v11, s43, v11")
        e("v_lshlrev_b32 v12, 1, v11")
        e.vmop("buffer_load_ushort v13, v12, s[16:19], 0 offen", "EP")
        e("s_movk_i32 s49, 896")
        e("v_mul_lo_u32 v14, v11, s49")
        e("v_lshl_add_u32 v14, v10, 3, v14")
        e("s_lshl_b32 s48, s28, 7")
        e("s_lshl_b32 s49, s42, 6")
        e("s_add_u32 s48, s48, s49")
        e("v_add_u32 v14, s48, v14")
        e("s_lshl_b32 s50, s29, 1")
        e("s_add_u32 s50, s50, s41")
        e("s_mul_i32 s50, s50, 14")
        e("s_lshl_b32 s51, s28, 1")
        e("s_add_u32 s50, s50, s51")
        e("s_add_u32 s50, s50, s42")
        e("s_lshl_b32 s50, s50, 11")
        e(f"s_add_u32 s50, s50, {H_OFF}")
        e.vmop("buffer_load_dwordx4 v[16:19], v1, s[24:27], s50 offen", "EP")
        e.vmop("buffer_load_dwordx4 v[20:23], v1, s[24:27], s50 offen offset:1024", "EP")
    e("s_mov_b32 s52, s41")
    e("s_mov_b32 s53, s42")
    ACC = lambda a, b: 64 + (a * 2 + b) * 16
    for r in range(64, 128):
        e(f"v_mov_b32 v{r}, 0")
    FR = lambda k, b: 128 + ((k % DF) * 2 + b) * 4
    WF = lambda p, nt: 192 + (p * 2 + nt) * 4

    def wdma(k):
        slot = k % RING
        e(f"s_add_u32 s40, s32, {slot*2048}")
        e("s_mov_b32 m0, s40")
        e(f"s_add_u32 s41, s34, {k*16*pitch}")
        e.vmop("buffer_load_dwordx4 v3, s[20:23], s41 offen lds", f"W{k}")
        e(f"s_add_u32 s40, s32, {slot*2048+1024}")
        e("s_mov_b32 m0, s40")
        e(f"s_add_u32 s41, s34, {(k*16+8)*pitch}")
        e.vmop("buffer_load_dwordx4 v3, s[20:23], s41 offen lds", f"W{k}")

    def fld(k):
        e(f"s_add_u32 s42, s35, {k*1024}")
        e.vmop(f"buffer_load_dwordx4 {vr(FR(k,0),4)}, v1, s[24:27], s42 offen", f"F{k}")
        e(f"s_add_u32 s42, s36, {k*1024}")
        e.vmop(f"buffer_load_dwordx4 {vr(FR(k,1),4)}, v1, s[24:27], s42 offen", f"F{k}")

    def rd(k):
        p = k & 1
        slot = k % RING
        o2 = 512 if natural else 1024
        for nt in range(2):
            a = "v5" if nt == 0 else "v6"
            e(f"ds_read_b64_tr_b16 {vr(WF(p,nt),2)}, {a} offset:{slot*2048}")
            e(f"ds_read_b64_tr_b16 {vr(WF(p,nt)+2,2)}, {a} offset:{slot*2048+o2}")

    for j in range(-DW, 0):
        wdma(j + DW)
        if j + DF >= 0:
            fld(j + DF)
    e.stamp()
    e.vmwait("W0")
    e.stamp()
    rd(0)
    for k in range(KS):
        if k + DW < KS:
            wdma(k + DW)
        e.vmwait([f"W{k+1}", f"F{k}"] if k + 1 < KS else [f"F{k}"])
        e("s_waitcnt lgkmcnt(0)")
        if k + 1 < KS:
            rd(k + 1)
        p = k & 1
        for a in range(2):
            for b in range(2):
                if which == 4:
                    e(f"{MFMA} {vr(ACC(a,b),16)}, {vr(WF(p,a),4)}, {vr(FR(k,b),4)}, {vr(ACC(a,b),16)}")
                else:
                    e(f"{MFMA} {vr(ACC(a,b),16)}, {vr(FR(k,b),4)}, {vr(WF(p,a),4)}, {vr(ACC(a,b),16)}")
        if k + DF < KS:
            fld(k + DF)
    e("s_nop 7")
    e("s_nop 7")
    e.stamp()
    e("v_add_u32 v9, s32, v1")
    for t in range(4):
        for q in range(4):
            e(f"ds_write_b128 v9, {vr(64+t*16+q*4,4)} offset:{t*4096+q*1024}")
    e("s_waitcnt lgkmcnt(0)")
    e("s_barrier")
    e("s_lshl_b32 s40, s30, 12")
    e("v_add_u32 v9, s40, v1")
    e("v_add_u32 v7, 0x10000, v9")
    for src in range(4):
        for q in range(4):
            e(f"ds_read_b128 {vr(128+src*16+q*4,4)}, {'v9' if src < 2 else 'v7'} offset:{(src&1)*32768+q*1024}")
    e("s_waitcnt lgkmcnt(0)")
    for r in range(16):
        e(f"v_add_f32 v{128+r}, v{128+r}, v{144+r}")
        e(f"v_add_f32 v{160+r}, v{160+r}, v{176+r}")
    for r in range(16):
        e(f"v_add_f32 v{128+r}, v{128+r}, v{160+r}")
    e("s_lshr_b32 s41, s30, 1")
    e("s_and_b32 s42, s30, 1")
    e("v_lshrrev_b32 v10, 5, v2")
    if which == 4:
        e.vmwait("EP")
        for j in range(8):
            e(f"v_lshlrev_b32 v{32+2*j}, 16, v{16+j}")
            e(f"v_and_b32 v{33+2*j}, 0xffff0000, v{16+j}")
        for r in range(16):
            e(f"v_add_f32 v{128+r}, v{128+r}, v{32+r}")
        c1 = -2.0 * LOG2E * 0.7978845608028654
        c3 = c1 * 0.044715
        e(f"s_mov_b32 s45, {f2u(c3):#x}")
        e(f"s_mov_b32 s46, {f2u(c1):#x}")
        for r in range(16):
            e(f"v_mul_f32 v{32+r}, v{128+r}, v{128+r}")
        for r in range(16):
            e(f"v_mov_b32 v{48+r}, s46")
        for r in range(16):
            e(f"v_fma_f32 v{32+r}, v{32+r}, s45, v{48+r}")
        for r in range(16):
            e(f"v_mul_f32 v{32+r}, v{32+r}, v{128+r}")
        for r in range(16):
            e(f"v_exp_f32 v{32+r}, v{32+r}")
        for r in range(16):
            e(f"v_add_f32 v{32+r}, 1.0, v{32+r}")
        for r in range(16):
            e(f"v_rcp_f32 v{32+r}, v{32+r}")
        e("s_nop 0")
        for r in range(16):
            e(f"v_mul_f32 v{128+r}, v{128+r}, v{32+r}")
        for j in range(8):
            e(f"v_cvt_pk_bf16_f32 v{16+j}, v{128+2*j}, v{129+2*j}")
        e("s_lshl_b32 s43, s28, 1")
        e("s_add_u32 s43, s43, s42")
        e("s_mul_i32 s43, s43, 112")
        e("s_lshl_b32 s44, s29, 2")
        e("s_lshl_b32 s45, s41, 1")
        e("s_add_u32 s44, s44, s45")
        e("s_add_u32 s43, s43, s44")
        e("s_lshl_b32 s43, s43, 10")
        e(f"s_add_u32 s43, s43, {UF_OFF}")
        e("buffer_store_dwordx4 v[16:19], v1, s[24:27], s43 offen")
        e("buffer_store_dwordx4 v[20:23], v1, s[24:27], s43 offen offset:1024")
    else:
        e.vmwait("EP")
        e("v_lshlrev_b32 v13, 16, v13")
        for r in range(16):
            e(f"v_add_f32 v{128+r}, v{128+r}, v13")
        for j in range(8):
            e(f"v_cvt_pk_bf16_f32 v{24+j}, v{128+2*j}, v{129+2*j}")
        for j in range(8):
            e(f"v_lshlrev_b32 v{128+2*j}, 16, v{24+j}")
            e(f"v_and_b32 v{129+2*j}, 0xffff0000, v{24+j}")
            e(f"v_lshlrev_b32 v{32+2*j}, 16, v{16+j}")
            e(f"v_and_b32 v{33+2*j}, 0xffff0000, v{16+j}")
        for r in range(16):
            e(f"v_add_f32 v{128+r}, v{128+r}, v{32+r}")
        for j in range(8):
            e(f"v_cvt_pk_bf16_f32 v{24+j}, v{128+2*j}, v{129+2*j}")
        for q in range(4):
            e(f"buffer_store_dwordx2 {vr(24+2*q,2)}, v14, s[44:47], 0 offen offset:{q*16}")
    e.stamp()
    e.dump(which - 1, 24)
    e.label(f"{L}_END")
    e("s_endpgm")
    return e.text(), desc(name, 208), f"; @launch kernel={name} grid=({NWG},1,1) block=(256,1,1) lds=131072"


def build(which=(1, 2, 3, 4, 5)):
    gens = {1: k1, 2: k2, 3: k3, 4: lambda: kmlp(4), 5: lambda: kmlp(5)}
    ref = open(f"cdna_kernels/{NAME}.s.ref").read().splitlines()
    head = [l for l in ref if l.startswith(";") and "@launch" not in l and "Override" not in l and "grid=ceil" not in l]
    launches, bodies = [], []
    for w in which:
        t, d, l = gens[w]()
        launches.append(l)
        bodies.append(t + d)
    out = "\n".join(head) + "\n" + "\n".join(launches) + "\n"
    out += '.amdgcn_target "amdgcn-amd-amdhsa--gfx950"\n.text\n'
    out += "".join(bodies)
    return out


if __name__ == "__main__":
    s = build()
    open(f"cdna_kernels/{NAME}.s", "w").write(s)
    print("written", len(s), "bytes")
```

```python
import sys, os
DIAG = int(os.environ.get("DIAG", "0"))
EXP = os.environ.get("EXP", "")

NAME = "sequential_preLN__grouped_kv_mqa__mixer_token_mlp__prompt"

QF_OFF = 0x000000
KV_OFF = 0x200000
OF_OFF = 0x240000
H_OFF = 0x440000
HH_OFF = 0x600000
UF_OFF = 0x800000
KN_OFF = 0x9F0000
WF1_OFF = 0xA00000
WF2_OFF = 0x1200000
WS_SIZE = 0x4000000

LOG2E = 1.4426950408889634
QSCALE = LOG2E / (28.0 ** 0.5)


def f2u(x):
    import struct
    return struct.unpack("<I", struct.pack("<f", x))[0]


class E:
    def __init__(self):
        self.lines = []
        self.vm = []
        self.nst = 0

    def __call__(self, s):
        self.lines.append("    " + s)

    def label(self, s):
        self.lines.append(s + ":")

    def c(self, s):
        self.lines.append("    ; " + s)

    def vmop(self, s, tag):
        self(s)
        self.vm.append(tag)

    def vmwait(self, tags):
        if isinstance(tags, str):
            tags = [tags]
        last = -1
        for i, t in enumerate(self.vm):
            if t in tags:
                last = i
        if last < 0:
            return
        n = len(self.vm) - 1 - last
        assert n <= 63, n
        self(f"s_waitcnt vmcnt({n})")
        self.vm = self.vm[last + 1:]

    def stamp(self):
        if not DIAG:
            return
        i = self.nst
        self.nst += 1
        self(f"s_memtime s[{64+2*i}:{65+2*i}]")

    def dump(self, kid, ws_srd):
        if not DIAG:
            return
        self("s_waitcnt lgkmcnt(0) vmcnt(0)")
        self("v_lshrrev_b32 v250, 6, v0") if False else None
        self("s_lshl_b32 s98, s2, 3")
        self("s_add_u32 s98, s98, s30")
        self("s_lshl_b32 s98, s98, 7")
        self(f"s_add_u32 s98, s98, {0x3000000 + kid*0x40000}")
        self("s_memrealtime s[94:95]")
        self("s_waitcnt lgkmcnt(0)")
        self("v_mov_b32 v1, s96")
        self("v_mov_b32 v2, 120")
        self(f"buffer_store_dword v1, v2, s[{ws_srd}:{ws_srd+3}], s98 offen")
        self("s_nop 1")
        self("v_mov_b32 v1, s94")
        self("v_mov_b32 v2, 124")
        self(f"buffer_store_dword v1, v2, s[{ws_srd}:{ws_srd+3}], s98 offen")
        self("s_nop 1")
        for i in range(self.nst):
            self(f"v_mov_b32 v1, s{64+2*i}")
            self(f"v_mov_b32 v2, {i*4}")
            self(f"buffer_store_dword v1, v2, s[{ws_srd}:{ws_srd+3}], s98 offen")
            self("s_nop 1")

    def text(self):
        return "\n".join(self.lines) + "\n"


def srd(e, s, lo, hi, size):
    e(f"s_mov_b32 s{s}, s{lo}")
    e(f"s_and_b32 s{s+1}, s{hi}, 0xffff")
    e(f"s_mov_b32 s{s+2}, {size}")
    e(f"s_mov_b32 s{s+3}, 0x00020000")


def vr(a, n):
    return f"v[{a}:{a+n-1}]"


def header(e, name):
    e.lines.append(f".globl {name}")
    e.lines.append(".p2align 8")
    e.lines.append(f".type {name},@function")
    e.lines.append(f"{name}:")
    if DIAG:
        e("s_memrealtime s[96:97]")


def desc(name, vgpr, sgpr=102):
    acc = (vgpr + 3) // 4 * 4
    return f""".section .rodata,"a"
.p2align 6
.amdhsa_kernel {name}
  .amdhsa_next_free_vgpr {vgpr}
  .amdhsa_next_free_sgpr {sgpr}
  .amdhsa_accum_offset {acc}
  .amdhsa_group_segment_fixed_size 0
  .amdhsa_kernarg_size 104
  .amdhsa_user_sgpr_count 2
  .amdhsa_user_sgpr_kernarg_segment_ptr 1
  .amdhsa_system_sgpr_workgroup_id_x 1
.end_amdhsa_kernel
.text
"""


MFMA = "v_mfma_f32_32x32x16_bf16"


def k1():
    e = E()
    header(e, "k1_kernel")
    XB = 86016
    e("s_cmp_ge_u32 s2, 192")
    e("s_cbranch_scc1 K1_END")
    e("s_load_dwordx4 s[4:7], s[0:1], 0")
    e("s_load_dwordx4 s[8:11], s[0:1], 16")
    e("s_load_dwordx2 s[12:13], s[0:1], 96")
    e("v_lshrrev_b32 v1, 6, v0")
    e("v_and_b32 v2, 63, v0")
    e("v_readfirstlane_b32 s30, v1")
    e("s_mov_b32 s33, 0x2AAAAAAB")
    e("s_mul_hi_u32 s29, s2, s33")
    e("s_mul_i32 s33, s29, 6")
    e("s_sub_u32 s28, s2, s33")
    e("s_lshr_b32 s31, s30, 1")
    e("s_mul_i32 s32, s28, 3")
    e("s_add_u32 s32, s32, s31")
    e("v_lshlrev_b32 v6, 4, v2")
    e("s_waitcnt lgkmcnt(0)")
    e.stamp()
    srd(e, 16, 4, 5, 2048 * 896)
    srd(e, 24, 12, 13, WS_SIZE)
    e("s_lshl_b32 s38, s29, 3")
    e("s_add_u32 s38, s38, s30")
    e("s_mul_i32 s38, s38, 7168")
    e("s_mul_i32 s39, s30, 7296")
    e(f"s_add_u32 s39, s39, {XB}")
    e("s_mov_b64 s[50:51], exec")
    e("s_mov_b32 exec_hi, 0x00ffffff")
    for it in range(8):
        e("s_mov_b32 m0, s39")
        e("s_add_u32 s39, s39, 912")
        e("buffer_load_dwordx4 v6, s[16:19], s38 offen lds")
        e("s_add_u32 s38, s38, 896")
    e("s_mov_b64 exec, s[50:51]")
    e("s_cmp_ge_u32 s30, 6")
    e("s_cbranch_scc1 K1_NOW")
    e("s_cmp_lt_u32 s32, 16")
    e("s_cselect_b32 s20, s6, s8")
    e("s_cselect_b32 s21, s7, s9")
    e("s_mov_b32 s36, 896")
    e("s_cselect_b32 s34, s36, 56")
    e("s_mov_b32 s36, 401408")
    e("s_cselect_b32 s22, s36, 25088")
    e("s_mul_i32 s35, s32, 56")
    e("s_cselect_b32 s35, s35, 0")
    e("s_cmp_eq_u32 s32, 17")
    e("s_cselect_b32 s20, s10, s20")
    e("s_cselect_b32 s21, s11, s21")
    e("s_and_b32 s21, s21, 0xffff")
    e("s_mov_b32 s23, 0x00020000")
    e("v_lshrrev_b32 v3, 2, v2")
    e("v_mul_lo_u32 v4, v3, s34")
    e("v_and_b32 v5, 3, v2")
    e("v_lshl_add_u32 v4, v5, 4, v4")
    e("v_add_u32 v4, s35, v4")
    e("s_and_b32 s36, s30, 1")
    e("s_mul_i32 s36, s36, 224")
    e("s_mul_i32 s38, s36, s34")
    e("s_mul_i32 s39, s31, 28672")
    e("s_lshl_b32 s40, s36, 6")
    e("s_add_u32 s39, s39, s40")
    e("s_lshl_b32 s37, s34, 4")
    for it in range(14):
        e("s_mov_b32 m0, s39")
        e("s_add_u32 s39, s39, 1024")
        e("buffer_load_dwordx4 v4, s[20:23], s38 offen lds")
        e("s_add_u32 s38, s38, s37")
    e.stamp()
    e("s_waitcnt vmcnt(14)")
    e("s_branch K1_LN")
    e.label("K1_NOW")
    e.nst -= 1 if DIAG else 0
    e.stamp()
    e("s_waitcnt vmcnt(0)")
    e.label("K1_LN")
    e.stamp()
    e("v_lshrrev_b32 v7, 3, v2")
    e("s_movk_i32 s43, 912")
    e("v_mul_lo_u32 v7, v7, s43")
    e("v_and_b32 v8, 7, v2")
    e("v_lshl_add_u32 v7, v8, 4, v7")
    e("s_mul_i32 s39, s30, 7296")
    e(f"s_add_u32 s39, s39, {XB}")
    e("v_add_u32 v7, s39, v7")
    for i in range(7):
        e(f"ds_read_b128 {vr(64+4*i,4)}, v7 offset:{i*128}")
    e("s_waitcnt lgkmcnt(0)")
    for j in range(28):
        e(f"v_lshlrev_b32 v{128+2*j}, 16, v{64+j}")
        e(f"v_and_b32 v{129+2*j}, 0xffff0000, v{64+j}")
    e("v_pk_add_f32 v[52:53], v[128:129], v[130:131]")
    e("v_pk_mul_f32 v[54:55], v[128:129], v[128:129]")
    e("v_pk_fma_f32 v[54:55], v[130:131], v[130:131], v[54:55]")
    for j in range(2, 28):
        e(f"v_pk_add_f32 v[52:53], v[52:53], {vr(128+2*j,2)}")
        e(f"v_pk_fma_f32 v[54:55], {vr(128+2*j,2)}, {vr(128+2*j,2)}, v[54:55]")
    e("v_add_f32 v52, v52, v53")
    e("v_add_f32 v54, v54, v55")
    for ctrl in ("quad_perm:[1,0,3,2]", "quad_perm:[2,3,0,1]", "row_half_mirror"):
        e("s_nop 1")
        e(f"v_add_f32_dpp v52, v52, v52 {ctrl} row_mask:0xf bank_mask:0xf")
        e(f"v_add_f32_dpp v54, v54, v54 {ctrl} row_mask:0xf bank_mask:0xf")
    e(f"v_mul_f32 v52, {f2u(1.0/448):#x}, v52")
    e(f"v_mul_f32 v54, {f2u(1.0/448):#x}, v54")
    e("v_fma_f32 v54, -v52, v52, v54")
    e(f"v_add_f32 v54, {f2u(1e-5):#x}, v54")
    e("v_rsq_f32 v54, v54")
    e("s_nop 0")
    e("v_mul_f32 v52, v52, v54")
    e("v_sub_f32 v52, 0, v52")
    e("v_mov_b32 v53, v52")
    e("v_mov_b32 v55, v54")
    for j in range(28):
        e(f"v_pk_fma_f32 {vr(128+2*j,2)}, {vr(128+2*j,2)}, v[54:55], v[52:53]")
    for j in range(28):
        e(f"v_cvt_pk_bf16_f32 v{64+j}, v{128+2*j}, v{129+2*j}")
    for i in range(7):
        e(f"ds_write_b128 v7, {vr(64+4*i,4)} offset:{i*128}")
    e.stamp()
    e("s_waitcnt lgkmcnt(0) vmcnt(0)")
    e.stamp()
    e("s_barrier")
    e.stamp()
    e("s_cmp_ge_u32 s30, 6")
    e("s_cbranch_scc1 K1_END")
    e("s_cmp_ge_u32 s30, 3")
    e("s_cselect_b32 s39, 1, 0")
    e("s_mul_i32 s40, s39, 3")
    e("s_sub_u32 s40, s30, s40")
    e("s_lshl_b32 s41, s29, 1")
    e("s_add_u32 s41, s41, s39")
    e("v_and_b32 v8, 31, v2")
    e("s_lshl_b32 s42, s39, 5")
    e("v_add_u32 v8, s42, v8")
    e("v_mul_lo_u32 v8, v8, s43")
    e("v_lshrrev_b32 v9, 5, v2")
    e("v_lshl_add_u32 v8, v9, 4, v8")
    e(f"v_add_u32 v8, {XB}, v8")
    e("v_lshrrev_b32 v10, 4, v2")
    e("v_and_b32 v11, 15, v2")
    e("v_lshrrev_b32 v12, 1, v10")
    e("v_lshlrev_b32 v12, 3, v12")
    e("v_lshrrev_b32 v13, 2, v11")
    e("v_add_u32 v12, v12, v13")
    e("v_lshlrev_b32 v12, 6, v12")
    e("v_and_b32 v13, 1, v10")
    e("v_lshl_add_u32 v12, v13, 5, v12")
    e("v_and_b32 v13, 3, v11")
    e("v_lshl_add_u32 v12, v13, 3, v12")
    e("s_mul_i32 s44, s40, 28672")
    e("v_add_u32 v12, s44, v12")
    e("s_mul_i32 s45, s28, 3")
    e("s_add_u32 s45, s45, s40")
    e("s_cmp_eq_u32 s45, 17")
    e("s_cbranch_scc1 K1_V")

    def mainloop(isv):
        first = True
        for b in range(4):
            for i in range(7):
                kk = b * 7 + i
                e(f"ds_read_b128 {vr(128+4*kk,4)}, v8 offset:{kk*32}")
                e(f"ds_read_b64_tr_b16 {vr(64+4*kk-(0),2) if False else vr(16+4*kk,2)}, v12 offset:{kk*1024}")
                e(f"ds_read_b64_tr_b16 {vr(18+4*kk,2)}, v12 offset:{kk*1024+256}")
        for b in range(4):
            e(f"s_waitcnt lgkmcnt({min(15, (3-b)*21)})") if (3 - b) * 21 <= 15 else None
            if b == 0:
                pass
        return

    def mainloop2(isv):
        for b in range(4):
            for i in range(7):
                kk = b * 7 + i
                e(f"ds_read_b128 {vr(128+4*kk,4)}, v8 offset:{kk*32}")
                e(f"ds_read_b64_tr_b16 {vr(16+4*kk,2)}, v12 offset:{kk*1024}")
                e(f"ds_read_b64_tr_b16 {vr(18+4*kk,2)}, v12 offset:{kk*1024+256}")
            if b >= 1:
                e("s_waitcnt lgkmcnt(15)")
                e("s_waitcnt lgkmcnt(15)")
        return

    def mainloop3(isv):
        steps = list(range(28))
        nb = 4
        issued = 0
        first = True

        def issue(kk):
            e(f"ds_read_b128 {vr(128+4*kk,4)}, v8 offset:{kk*32}")
            e(f"ds_read_b64_tr_b16 {vr(16+4*kk,2)}, v12 offset:{kk*1024}")
            e(f"ds_read_b64_tr_b16 {vr(18+4*kk,2)}, v12 offset:{kk*1024+256}")
        for kk in range(nb):
            issue(kk)
        for kk in steps:
            if kk + nb < 28:
                issue(kk + nb)
                e(f"s_waitcnt lgkmcnt({3*nb})")
            else:
                e(f"s_waitcnt lgkmcnt({3*(27-kk)})")
            w = vr(16 + 4 * kk, 4)
            x = vr(128 + 4 * kk, 4)
            c = "0" if kk == 0 else "v[240:255]"
            if isv:
                e(f"{MFMA} v[240:255], {x}, {w}, {c}")
            else:
                e(f"{MFMA} v[240:255], {w}, {x}, {c}")
        e("s_nop 7")
        e("s_nop 7")

    mainloop3(False)
    e.stamp()
    e("s_cmp_lt_u32 s45, 16")
    e(f"s_cselect_b32 s46, {f2u(QSCALE):#x}, 1.0")
    e("v_cmp_eq_u32 vcc, 1, v9")
    for r in range(16):
        e(f"v_mul_f32 v{240+r}, s46, v{240+r}")
    e("v_mov_b32 v3, 0")
    for r in range(12, 16):
        e(f"v_cndmask_b32 v{240+r}, v{240+r}, v3, vcc")
    for j in range(8):
        e(f"v_cvt_pk_bf16_f32 v{64+j}, v{240+2*j}, v{241+2*j}")
    e("s_lshl_b32 s47, s45, 6")
    e("s_add_u32 s47, s47, s41")
    e("s_lshl_b32 s47, s47, 11")
    e(f"s_add_u32 s47, s47, {QF_OFF}")
    e("s_lshl_b32 s48, s41, 12")
    e(f"s_add_u32 s48, s48, {KV_OFF}")
    e("s_cmp_lt_u32 s45, 16")
    e("s_cselect_b32 s47, s47, s48")
    e("buffer_store_dwordx4 v[64:67], v6, s[24:27], s47 offen")
    e("buffer_store_dwordx4 v[68:71], v6, s[24:27], s47 offen offset:1024")
    e("s_cmp_eq_u32 s45, 16")
    e("s_cbranch_scc0 K1_NOKN")
    e("v_pk_mul_f32 v[4:5], v[240:241], v[240:241]")
    for j in range(1, 8):
        e(f"v_pk_fma_f32 v[4:5], {vr(240+2*j,2)}, {vr(240+2*j,2)}, v[4:5]")
    e("v_add_f32 v4, v4, v5")
    e("v_mov_b32 v5, v4")
    e("s_nop 1")
    e("v_permlane32_swap_b32 v4, v5")
    e("v_add_f32 v4, v4, v5")
    for ctrl in ("row_shr:1", "row_shr:2", "row_shr:4", "row_shr:8", "row_bcast:15 row_mask:0xa", "row_bcast:31 row_mask:0xc"):
        e("s_nop 1")
        if "row_mask" in ctrl:
            e(f"v_max_f32_dpp v4, v4, v4 {ctrl} bank_mask:0xf")
        else:
            e(f"v_max_f32_dpp v4, v4, v4 {ctrl} row_mask:0xf bank_mask:0xf")
    e("s_nop 1")
    e("v_readlane_b32 s49, v4, 63")
    e("s_lshl_b32 s48, s41, 2")
    e(f"s_add_u32 s48, s48, {KN_OFF}")
    e("v_mov_b32 v5, 0")
    e("v_mov_b32 v4, s49")
    e("buffer_store_dword v4, v5, s[24:27], s48 offen")
    e.label("K1_NOKN")
    e.stamp()
    e.dump(0, 24)
    e("s_endpgm")
    e.label("K1_V")
    mainloop3(True)
    e("v_and_b32 v3, 31, v2")
    e("v_cmp_eq_u32 vcc, 28, v3")
    e("v_cmp_lt_u32 s[52:53], 28, v3")
    e("v_mov_b32 v4, 1.0")
    e("v_mov_b32 v5, 0")
    for r in range(16):
        e(f"v_cndmask_b32 v{240+r}, v{240+r}, v4, vcc")
    for r in range(16):
        e(f"v_cndmask_b32 v{240+r}, v{240+r}, v5, s[52:53]")
    for j in range(8):
        e(f"v_cvt_pk_bf16_f32 v{64+j}, v{240+2*j}, v{241+2*j}")
    e("s_lshl_b32 s48, s41, 12")
    e(f"s_add_u32 s48, s48, {KV_OFF + 2048}")
    e("buffer_store_dwordx4 v[64:67], v6, s[24:27], s48 offen")
    e("buffer_store_dwordx4 v[68:71], v6, s[24:27], s48 offen offset:1024")
    e.label("K1_END")
    e("s_endpgm")
    return e.text(), desc("k1_kernel", 256), "; @launch kernel=k1_kernel grid=(192,1,1) block=(512,1,1) lds=144384"


def k2():
    e = E()
    header(e, "k2_kernel")
    T_RESC = 8.0
    Q0, Q1 = 16, 20
    NEGM = 24
    S = [40, 56]
    O = 72
    P = 88
    KF = [96, 104]
    VF = [112, 120]
    e("s_cmp_ge_u32 s2, 256")
    e("s_cbranch_scc1 K2_END")
    e("s_load_dwordx2 s[4:5], s[0:1], 96")
    e("v_lshrrev_b32 v1, 6, v0")
    e("v_and_b32 v2, 63, v0")
    e("v_readfirstlane_b32 s30, v1")
    e("s_lshr_b32 s31, s2, 4")
    e("s_and_b32 s32, s2, 15")
    e("s_lshl_b32 s33, s32, 2")
    e("s_add_u32 s33, s33, s30")
    e("v_lshlrev_b32 v1, 4, v2")
    e("s_waitcnt lgkmcnt(0)")
    e.stamp()
    srd(e, 8, 4, 5, WS_SIZE)
    e("s_cmp_eq_u32 s30, 4")
    e("s_cbranch_scc1 K2_LOADER")
    e("s_lshl_b32 s34, s31, 6")
    e("s_add_u32 s34, s34, s33")
    e("s_lshl_b32 s34, s34, 11")
    e(f"s_add_u32 s34, s34, {QF_OFF}")
    e(f"buffer_load_dwordx4 {vr(Q0,4)}, v1, s[8:11], s34 offen")
    e(f"buffer_load_dwordx4 {vr(Q1,4)}, v1, s[8:11], s34 offen offset:1024")
    e("s_lshl_b32 s35, s30, 13")
    e(f"s_add_u32 s40, s35, {KV_OFF}")
    e("s_mov_b32 s41, s35")
    for half in range(2):
        e("s_mov_b32 m0, s41")
        e("s_add_u32 s41, s41, 4096")
        for i in range(4):
            e(f"buffer_load_dwordx4 v1, s[8:11], s40 offen offset:{i*1024} lds")
        e("s_add_u32 s40, s40, 4096")
    e("v_lshrrev_b32 v4, 2, v1")
    e(f"s_mov_b32 s36, {KN_OFF}")
    e("buffer_load_dword v5, v4, s[8:11], s36 offen")
    for r in range(16):
        e(f"v_mov_b32 v{O+r}, 0")
        e(f"v_mov_b32 v{NEGM+r}, 0")
    e("v_mov_b32 v2, v1")
    e("v_add_u32 v3, 32768, v1")
    e.stamp()
    e("s_waitcnt vmcnt(0)")
    e("s_barrier")
    e.stamp()
    e(f"ds_read_b128 {vr(KF[0],4)}, v2 offset:0")
    e(f"ds_read_b128 {vr(KF[0]+4,4)}, v2 offset:1024")
    e(f"ds_read_b128 {vr(KF[1],4)}, v2 offset:4096")
    e(f"ds_read_b128 {vr(KF[1]+4,4)}, v2 offset:5120")
    e(f"ds_read_b128 {vr(VF[0],4)}, v2 offset:2048")
    e(f"ds_read_b128 {vr(VF[0]+4,4)}, v2 offset:3072")
    for ctrl in ("row_shr:1", "row_shr:2", "row_shr:4", "row_shr:8", "row_bcast:15 row_mask:0xa", "row_bcast:31 row_mask:0xc"):
        e("s_nop 1")
        if "row_mask" in ctrl:
            e(f"v_max_f32_dpp v5, v5, v5 {ctrl} bank_mask:0xf")
        else:
            e(f"v_max_f32_dpp v5, v5, v5 {ctrl} row_mask:0xf bank_mask:0xf")
    e("v_mov_b32 v6, 0")
    for j in range(8):
        e(f"v_lshlrev_b32 v7, 16, v{Q0+j}")
        e(f"v_and_b32 v8, 0xffff0000, v{Q0+j}")
        e("v_fmac_f32 v6, v7, v7")
        e("v_fmac_f32 v6, v8, v8")
    e("v_readlane_b32 s37, v5, 63")
    e("v_mov_b32 v7, v6")
    e("s_nop 1")
    e("v_permlane32_swap_b32 v6, v7")
    e("v_add_f32 v6, v6, v7")
    e("v_mul_f32 v6, s37, v6")
    e(f"v_mul_f32 v6, {f2u(1.05):#x}, v6")
    e(f"s_mov_b32 s38, {f2u(48.0*48.0):#x}")
    e("v_cmp_ge_f32 vcc, s38, v6")
    e("v_sqrt_f32 v7, v6")
    e("s_waitcnt lgkmcnt(0)")
    e("s_cmp_eq_u64 vcc, exec")
    e("s_cbranch_scc0 K2_SAFE")
    e(f"v_mul_f32 v7, {f2u(-1.001):#x}, v7")
    for r in range(16):
        e(f"v_mov_b32 v{NEGM+r}, v7")
    e("s_nop 1")
    e(f"{MFMA} {vr(S[0],16)}, {vr(KF[0],4)}, {vr(Q0,4)}, {vr(NEGM,16)}")
    e(f"{MFMA} {vr(S[0],16)}, {vr(KF[0]+4,4)}, {vr(Q1,4)}, {vr(S[0],16)}")
    e("s_nop 7")
    e("s_nop 7")
    for r in range(4):
        e(f"v_exp_f32 v{S[0]+r}, v{S[0]+r}")
    e("s_mov_b32 s44, 0")
    e("s_branch K2F_LOOP")
    e.label("K2_SAFE")
    e(f"{MFMA} {vr(S[0],16)}, {vr(KF[0],4)}, {vr(Q0,4)}, 0")
    e(f"{MFMA} {vr(S[0],16)}, {vr(KF[0]+4,4)}, {vr(Q1,4)}, {vr(S[0],16)}")
    e("s_nop 7")
    e("s_nop 7")

    def maxtree(sb):
        e(f"v_max3_f32 v4, v{sb}, v{sb+1}, v{sb+2}")
        e(f"v_max3_f32 v5, v{sb+3}, v{sb+4}, v{sb+5}")
        e(f"v_max3_f32 v6, v{sb+6}, v{sb+7}, v{sb+8}")
        e(f"v_max3_f32 v7, v{sb+9}, v{sb+10}, v{sb+11}")
        e(f"v_max3_f32 v4, v4, v{sb+12}, v{sb+13}")
        e(f"v_max3_f32 v5, v5, v{sb+14}, v{sb+15}")
        e("v_max3_f32 v4, v4, v6, v7")
        e("v_max_f32 v4, v4, v5")

    def rescale(sb, first):
        e("s_nop 7")
        e("s_nop 7")
        if not first:
            e("v_mov_b32 v4, v6")
        e("v_mov_b32 v5, v4")
        e("s_nop 1")
        e("v_permlane32_swap_b32 v4, v5")
        e("v_max_f32 v4, v4, v5")
        if not first:
            e("v_max_f32 v4, 0, v4")
            e("v_sub_f32 v5, 0, v4")
            e("v_exp_f32 v5, v5")
            e("s_nop 0")
            for r in range(16):
                e(f"v_mul_f32 v{O+r}, v5, v{O+r}")
        for r in range(16):
            e(f"v_sub_f32 v{sb+r}, v{sb+r}, v4")
        for r in range(16):
            e(f"v_sub_f32 v{NEGM+r}, v{NEGM+r}, v4")

    maxtree(S[0])
    rescale(S[0], True)
    for r in range(4):
        e(f"v_exp_f32 v{S[0]+r}, v{S[0]+r}")
    e("s_mov_b32 s44, 0")
    e(f"s_mov_b32 s45, {f2u(T_RESC):#x}")

    rare = []

    def tile(i, uid, last_chunk, fast=False):
        p = i & 1
        sc, sn = S[p], S[1 - p]
        has_nxt = not (last_chunk and i == 7)
        has_k2 = not (last_chunk and i >= 6)
        if i == 6 and not last_chunk:
            e("s_barrier")
        def E_(r):
            e(f"v_exp_f32 v{sc+r}, v{sc+r}")

        def C_(j):
            e(f"v_cvt_pk_bf16_f32 v{P+j}, v{sc+2*j}, v{sc+2*j+1}")
        if has_nxt:
            e(f"{MFMA} {vr(sn,16)}, {vr(KF[1-p],4)}, {vr(Q0,4)}, {vr(NEGM,16)}")
        if has_k2 and "nolds" not in EXP:
            t2 = i + 2
            a, o = ("v2", t2 * 4096) if t2 < 8 else ("v3", (t2 - 8) * 4096)
            e(f"ds_read_b128 {vr(KF[p],4)}, {a} offset:{o}")
            e(f"ds_read_b128 {vr(KF[p]+4,4)}, {a} offset:{o+1024}")
        for r in range(4, 8):
            E_(r)
        if has_nxt:
            e(f"{MFMA} {vr(sn,16)}, {vr(KF[1-p]+4,4)}, {vr(Q1,4)}, {vr(sn,16)}")
        if has_nxt and "nolds" not in EXP:
            t1 = i + 1
            a, o = ("v2", t1 * 4096) if t1 < 8 else ("v3", (t1 - 8) * 4096)
            e(f"ds_read_b128 {vr(VF[1-p],4)}, {a} offset:{o+2048}")
            e(f"ds_read_b128 {vr(VF[1-p]+4,4)}, {a} offset:{o+3072}")
        E_(8)
        for j in range(4):
            C_(j)
        E_(9)
        E_(10)
        e(f"{MFMA} {vr(O,16)}, {vr(VF[p],4)}, {vr(P,4)}, {vr(O,16)}")
        X = []
        if has_nxt and "nomax" not in EXP and not fast:
            X = [f"v_max3_f32 v4, v{sn}, v{sn+1}, v{sn+2}",
                 f"v_max3_f32 v5, v{sn+3}, v{sn+4}, v{sn+5}",
                 f"v_max3_f32 v6, v{sn+6}, v{sn+7}, v{sn+8}",
                 f"v_max3_f32 v7, v{sn+9}, v{sn+10}, v{sn+11}",
                 f"v_max3_f32 v4, v4, v{sn+12}, v{sn+13}",
                 f"v_max3_f32 v5, v5, v{sn+14}, v{sn+15}",
                 "v_max3_f32 v6, v6, v7, v4",
                 "v_max_f32 v6, v6, v5",
                 "v_cmp_lt_f32 vcc, s45, v6"]

        def X_(n):
            for _ in range(n):
                if X:
                    e(X.pop(0))
        E_(11)
        E_(12)
        X_(2)
        E_(13)
        X_(2)
        E_(14)
        X_(2)
        E_(15)
        X_(1)
        if not X:
            e("s_nop 0")
        C_(4)
        X_(1)
        C_(5)
        X_(1)
        C_(6)
        C_(7)
        e("s_nop 1")
        e(f"{MFMA} {vr(O,16)}, {vr(VF[p]+4,4)}, {vr(P+4,4)}, {vr(O,16)}")
        if has_nxt:
            e("s_waitcnt lgkmcnt(0)")
            if "nomax" not in EXP and not fast:
                e(f"s_cbranch_vccnz K2_R_{uid}")
                e.label(f"K2_B_{uid}")
                rare.append((f"K2_R_{uid}", f"K2_B_{uid}", sn))
            for r in range(4):
                e(f"v_exp_f32 v{sn+r}, v{sn+r}")

    for fast in (False, True):
        L = "K2F" if fast else "K2"
        e.label(f"{L}_LOOP")
        for i in range(8):
            tile(i, f"{L}a{i}", False, fast)
        e("v_mov_b32 v2, v3")
        e("v_add_u32 v3, 32768, v3")
        e("v_and_b32 v3, 0x1ffff, v3")
        e("s_add_u32 s44, s44, 1")
        e("s_cmp_lt_u32 s44, 7")
        e(f"s_cbranch_scc1 {L}_LOOP")
        for i in range(8):
            tile(i, f"{L}b{i}", True, fast)
        if not fast:
            e("s_branch K2_EPI")
    e.label("K2_EPI")
    e.stamp()
    e("s_nop 7")
    e("s_nop 7")
    e(f"v_mov_b32 v4, v{O+12}")
    e(f"v_mov_b32 v5, v{O+12}")
    e("s_nop 1")
    e("v_permlane32_swap_b32 v4, v5")
    e("v_rcp_f32 v5, v5")
    e("v_lshrrev_b32 v6, 9, v1")
    e("v_cmp_eq_u32 vcc, 1, v6")
    for r in range(16):
        e(f"v_mul_f32 v{O+r}, v5, v{O+r}")
    e("v_mov_b32 v7, 0")
    for r in range(12, 16):
        e(f"v_cndmask_b32 v{O+r}, v{O+r}, v7, vcc")
    for j in range(8):
        e(f"v_cvt_pk_bf16_f32 v{P+j}, v{O+2*j}, v{O+2*j+1}")
    e("s_lshl_b32 s34, s33, 4")
    e("s_add_u32 s34, s34, s31")
    e("s_lshl_b32 s34, s34, 11")
    e(f"s_add_u32 s34, s34, {OF_OFF}")
    e(f"buffer_store_dwordx4 {vr(P,4)}, v1, s[8:11], s34 offen")
    e(f"buffer_store_dwordx4 {vr(P+4,4)}, v1, s[8:11], s34 offen offset:1024")
    e.stamp()
    e.dump(1, 8)
    e("s_endpgm")
    e.label("K2_LOADER")

    def dma32(c):
        for g in range(8):
            e(f"s_mov_b32 m0, {(c % 4)*32768 + g*4096}")
            e(f"s_mov_b32 s40, {KV_OFF + c*32768 + g*4096}")
            for i in range(4):
                e(f"buffer_load_dwordx4 v1, s[8:11], s40 offen offset:{i*1024} lds")
    e("s_load_dwordx2 s[12:13], s[0:1], 32")
    e("s_load_dwordx2 s[14:15], s[0:1], 48")
    e("s_load_dwordx2 s[16:17], s[0:1], 64")
    e("s_barrier")
    dma32(1)
    e("s_waitcnt lgkmcnt(0)")
    srd(e, 20, 12, 13, 401408)
    srd(e, 24, 14, 15, 7340032)
    srd(e, 28, 16, 17, 7340032)
    e("s_lshl_b32 s46, s2, 11")
    e("s_mul_i32 s47, s2, 28672")
    pf = [(20, 46, 0), (20, 46, 1024)] + [(24, 47, i * 1024) for i in range(28)] + [(28, 47, i * 1024) for i in range(28)]

    def prefetch(n):
        for _ in range(n):
            if not pf:
                return 0
            sr, so, off = pf.pop(0)
            if off >= 4096:
                e(f"s_add_u32 s48, s{so}, {off & ~4095}")
                e(f"buffer_load_dwordx4 v[8:11], v1, s[{sr}:{sr+3}], s48 offen offset:{off & 4095}")
            else:
                e(f"buffer_load_dwordx4 v[8:11], v1, s[{sr}:{sr+3}], s{so} offen offset:{off}")
        return n
    dma32(2)
    npf_prev2, npf_prev1 = 0, 0
    for c in range(7):
        if c <= 5:
            e(f"s_waitcnt vmcnt({npf_prev2 + 32 + npf_prev1})")
        else:
            e(f"s_waitcnt vmcnt({npf_prev2 + npf_prev1})")
        e("s_barrier")
        if c + 3 <= 7:
            dma32(c + 3)
        n0 = len(pf)
        prefetch(9)
        npf = n0 - len(pf)
        npf_prev2, npf_prev1 = npf_prev1, npf
    e("s_endpgm")
    for (rl, bl, sn) in rare:
        e.label(rl)
        rescale(sn, False)
        e(f"s_branch {bl}")
    e.label("K2_END")
    e("s_endpgm")
    return e.text(), desc("k2_kernel", 128), "; @launch kernel=k2_kernel grid=(256,1,1) block=(320,1,1) lds=131072"


def tr_addr(e, vl, va0, va1, vt0, vt1, natural):
    e(f"v_lshrrev_b32 v{vt0}, 5, v{vl}")
    e(f"v_lshlrev_b32 v{vt0}, {3 if natural else 2}, v{vt0}")
    e(f"v_bfe_u32 v{vt1}, v{vl}, 2, 2")
    e(f"v_add_u32 v{vt0}, v{vt0}, v{vt1}")
    e(f"v_lshlrev_b32 v{va0}, 7, v{vt0}")
    e(f"v_bfe_u32 v{vt1}, v{vl}, 4, 1")
    e(f"v_lshl_add_u32 v{va0}, v{vt1}, 5, v{va0}")
    e(f"v_and_b32 v{vt1}, 3, v{vl}")
    e(f"v_lshl_add_u32 v{va0}, v{vt1}, 3, v{va0}")
    e(f"v_bfe_u32 v{vt1}, v{vl}, 3, 1")
    e(f"v_lshlrev_b32 v{vt1}, 6, v{vt1}")
    e(f"v_xor_b32 v{va0}, v{va0}, v{vt1}")
    e(f"v_xor_b32 v{va1}, 64, v{va0}")


def dma_voff(e, vl, vd, vt, pitch_sreg):
    e(f"v_lshrrev_b32 v{vt}, 3, v{vl}")
    e(f"v_mul_lo_u32 v{vd}, v{vt}, s{pitch_sreg}")
    e(f"v_bfe_u32 v{vt}, v{vl}, 4, 1")
    e(f"v_lshlrev_b32 v{vt}, 2, v{vt}")
    e(f"v_xor_b32 v{vt}, v{vt}, v{vl}")
    e(f"v_and_b32 v{vt}, 7, v{vt}")
    e(f"v_lshl_add_u32 v{vd}, v{vt}, 4, v{vd}")


def k3():
    e = E()
    header(e, "k3_kernel")
    RING = 6
    RSZ = RING * 2048
    RBASE = 32768
    XR = RBASE + 7 * RSZ
    STAT = XR + 32 * 912
    e("s_cmp_ge_u32 s2, 64")
    e("s_cbranch_scc1 K3_END")
    e("s_load_dwordx2 s[4:5], s[0:1], 0")
    e("s_load_dwordx2 s[6:7], s[0:1], 32")
    e("s_load_dwordx2 s[12:13], s[0:1], 96")
    e("v_lshrrev_b32 v1, 6, v0")
    e("v_and_b32 v2, 63, v0")
    e("v_readfirstlane_b32 s30, v1")
    e("s_movk_i32 s31, 896")
    e("v_lshlrev_b32 v1, 4, v2")
    dma_voff(e, 2, 3, 4, 31)
    tr_addr(e, 2, 5, 6, 7, 8, False)
    e(f"s_mul_i32 s32, s30, {RSZ}")
    e(f"s_add_u32 s32, s32, {RBASE}")
    e("v_add_u32 v5, s32, v5")
    e("v_add_u32 v6, s32, v6")
    e("s_lshl_b32 s33, s30, 7")
    e("v_add_u32 v3, s33, v3")
    e("s_waitcnt lgkmcnt(0)")
    e.stamp()
    srd(e, 16, 4, 5, 2048 * 896)
    srd(e, 20, 6, 7, 401408)
    srd(e, 24, 12, 13, WS_SIZE)
    e.vm = []

    def wdma(k):
        head, t = k >> 1, k & 1
        rb = head * 28 + 16 * t
        slot = k % RING
        e(f"s_add_u32 s40, s32, {slot*2048}")
        e("s_mov_b32 m0, s40")
        e(f"s_mov_b32 s41, {rb*896}")
        e.vmop("buffer_load_dwordx4 v3, s[20:23], s41 offen lds", f"W{k}")
        e(f"s_add_u32 s40, s32, {slot*2048+1024}")
        e("s_mov_b32 m0, s40")
        e(f"s_mov_b32 s41, {(rb+8)*896}")
        e.vmop("buffer_load_dwordx4 v3, s[20:23], s41 offen lds", f"W{k}")

    DW = 5
    e("s_lshl_b32 s34, s2, 15")
    e(f"s_add_u32 s34, s34, {OF_OFF}")
    e("s_lshl_b32 s36, s30, 10")
    for it in range(5):
        if it == 4:
            e("s_min_u32 s36, s36, 31744")
        e("s_add_u32 s37, s34, s36")
        e("s_mov_b32 m0, s36")
        e("s_nop 0")
        e.vmop("buffer_load_dwordx4 v1, s[24:27], s37 offen lds", "OF")
        e("s_add_u32 s36, s36, 7168")
    for k in range(DW):
        wdma(k)
    e("s_lshl_b32 s38, s2, 5")
    e("s_add_u32 s38, s38, s30")
    e("s_mul_i32 s38, s38, 896")
    e("s_mul_i32 s39, s30, 912")
    e(f"s_add_u32 s39, s39, {XR}")
    e("s_mov_b64 s[50:51], exec")
    e("s_mov_b32 exec_hi, 0x00ffffff")
    for it in range(5):
        if it == 4:
            e("s_cmp_ge_u32 s30, 4")
            e("s_cselect_b32 s46, 6272, 0")
            e("s_sub_u32 s38, s38, s46")
            e("s_cselect_b32 s46, 6384, 0")
            e("s_sub_u32 s39, s39, s46")
        e("s_mov_b32 m0, s39")
        e(f"s_add_u32 s39, s39, {7*912}")
        e.vmop("buffer_load_dwordx4 v1, s[16:19], s38 offen lds", "X")
        e(f"s_add_u32 s38, s38, {7*896}")
    e("s_mov_b64 exec, s[50:51]")
    ACC = [32, 48]
    e.stamp()
    e.vmwait("OF")
    e("s_barrier")
    e.stamp()
    WF = [[64, 68], [72, 76]]
    OFR = [80, 84]

    def rd(k):
        p = k & 1
        slot = k % RING
        for nt in range(2):
            a = "v5" if nt == 0 else "v6"
            e(f"ds_read_b64_tr_b16 {vr(WF[p][nt],2)}, {a} offset:{slot*2048}")
            e(f"ds_read_b64_tr_b16 {vr(WF[p][nt]+2,2)}, {a} offset:{slot*2048+1024}")
        e(f"ds_read_b128 {vr(OFR[p],4)}, v1 offset:{k*1024}")

    e.vmwait("W0")
    rd(0)
    for k in range(32):
        if k + DW < 32:
            wdma(k + DW)
        if k + 1 < 32:
            e.vmwait(f"W{k+1}")
            e("s_waitcnt lgkmcnt(0)")
            rd(k + 1)
        else:
            e("s_waitcnt lgkmcnt(0)")
        p = k & 1
        for nt in range(2):
            c = "0" if k == 0 else vr(ACC[nt], 16)
            e(f"{MFMA} {vr(ACC[nt],16)}, {vr(WF[p][nt],4)}, {vr(OFR[p],4)}, {c}")
    e.stamp()
    e("s_waitcnt vmcnt(0)")
    e("s_barrier")
    e.stamp()
    e("v_and_b32 v9, 31, v2")
    e("s_movk_i32 s42, 912")
    e("v_mul_lo_u32 v9, v9, s42")
    e("v_lshrrev_b32 v10, 5, v2")
    e("v_lshl_add_u32 v9, v10, 3, v9")
    e("v_add_u32 v9, s33, v9")
    e(f"v_add_u32 v9, {XR}, v9")
    for nt in range(2):
        for q in range(4):
            e(f"ds_read_b64 {vr(96+nt*8+q*2,2)}, v9 offset:{nt*64+q*16}")
    for j in range(16):
        e(f"v_cvt_pk_bf16_f32 v{112+j}, v{32+2*j}, v{33+2*j}")
    e("s_waitcnt lgkmcnt(0)")
    for j in range(16):
        e(f"v_lshlrev_b32 v{32+2*j}, 16, v{112+j}")
        e(f"v_and_b32 v{33+2*j}, 0xffff0000, v{112+j}")
        e(f"v_lshlrev_b32 v{64+2*j}, 16, v{96+j}")
        e(f"v_and_b32 v{65+2*j}, 0xffff0000, v{96+j}")
    for j in range(16):
        e(f"v_pk_add_f32 {vr(32+2*j,2)}, {vr(32+2*j,2)}, {vr(64+2*j,2)}")
    for j in range(16):
        e(f"v_cvt_pk_bf16_f32 v{112+j}, v{32+2*j}, v{33+2*j}")
    e("s_mul_i32 s43, s2, 14")
    e("s_lshl_b32 s44, s30, 1")
    e("s_add_u32 s43, s43, s44")
    e("s_lshl_b32 s43, s43, 11")
    e(f"s_add_u32 s43, s43, {H_OFF}")
    for i in range(4):
        e(f"buffer_store_dwordx4 {vr(112+4*i,4)}, v1, s[24:27], s43 offen offset:{i*1024}")
    for j in range(16):
        e(f"v_lshlrev_b32 v{32+2*j}, 16, v{112+j}")
        e(f"v_and_b32 v{33+2*j}, 0xffff0000, v{112+j}")
    e("v_pk_add_f32 v[12:13], v[32:33], v[34:35]")
    e("v_pk_mul_f32 v[16:17], v[32:33], v[32:33]")
    e("v_pk_fma_f32 v[16:17], v[34:35], v[34:35], v[16:17]")
    for j in range(2, 16):
        e(f"v_pk_add_f32 v[12:13], v[12:13], {vr(32+2*j,2)}")
        e(f"v_pk_fma_f32 v[16:17], {vr(32+2*j,2)}, {vr(32+2*j,2)}, v[16:17]")
    e("v_add_f32 v12, v12, v13")
    e("v_add_f32 v16, v16, v17")
    e("v_mov_b32 v13, v12")
    e("v_mov_b32 v17, v16")
    e("s_nop 1")
    e("v_permlane32_swap_b32 v12, v13")
    e("v_permlane32_swap_b32 v16, v17")
    e("v_add_f32 v12, v12, v13")
    e("v_add_f32 v13, v16, v17")
    e("v_and_b32 v14, 31, v2")
    e("v_lshlrev_b32 v14, 3, v14")
    e(f"v_add_u32 v14, {STAT}, v14")
    e("s_lshl_b32 s46, s30, 8")
    e("v_add_u32 v15, s46, v14")
    e.stamp()
    e("ds_write_b64 v15, v[12:13]")
    e("s_waitcnt lgkmcnt(0)")
    e("s_barrier")
    e.stamp()
    for w in range(7):
        e(f"ds_read_b64 {vr(16+2*w,2)}, v14 offset:{w*256}")
    e("s_waitcnt lgkmcnt(0)")
    e("v_pk_add_f32 v[12:13], v[16:17], v[18:19]")
    for w in range(2, 7):
        e(f"v_pk_add_f32 v[12:13], v[12:13], {vr(16+2*w,2)}")
    e(f"v_mul_f32 v12, {f2u(1.0/448):#x}, v12")
    e(f"v_mul_f32 v13, {f2u(1.0/448):#x}, v13")
    e("v_fma_f32 v13, -v12, v12, v13")
    e("v_max_f32 v13, 0, v13")
    e(f"v_add_f32 v16, {f2u(1e-5):#x}, v13")
    e("v_rsq_f32 v16, v16")
    e("s_nop 0")
    e("v_mul_f32 v13, v13, v16")
    e("v_mul_f32 v13, v13, v16")
    e(f"v_add_f32 v13, {f2u(1e-5):#x}, v13")
    e("v_rsq_f32 v13, v13")
    e("s_nop 0")
    e("v_mul_f32 v16, v16, v13")
    e("v_mul_f32 v12, v12, v16")
    e("v_sub_f32 v12, 0, v12")
    e("v_mov_b32 v13, v12")
    e("v_mov_b32 v17, v16")
    for j in range(16):
        e(f"v_pk_fma_f32 {vr(32+2*j,2)}, {vr(32+2*j,2)}, v[16:17], v[12:13]")
    for j in range(16):
        e(f"v_cvt_pk_bf16_f32 v{112+j}, v{32+2*j}, v{33+2*j}")
    e("v_and_b32 v14, 31, v2")
    e("s_movk_i32 s42, 968")
    e("v_mul_lo_u32 v14, v14, s42")
    e("v_lshl_add_u32 v14, v10, 3, v14")
    e("v_add_u32 v14, s33, v14")
    for nt in range(2):
        for q in range(4):
            e(f"ds_write_b64 v14, {vr(112+nt*8+q*2,2)} offset:{nt*64+q*16}")
    e.stamp()
    e("s_waitcnt lgkmcnt(0)")
    e("s_barrier")
    e.stamp()
    e("v_lshrrev_b32 v15, 5, v2")
    e("v_lshlrev_b32 v15, 3, v15")
    e("v_bfe_u32 v16, v2, 2, 2")
    e("v_add_u32 v15, v15, v16")
    e("v_mul_lo_u32 v15, v15, s42")
    e("v_bfe_u32 v16, v2, 4, 1")
    e("v_lshl_add_u32 v15, v16, 5, v15")
    e("v_and_b32 v16, 3, v2")
    e("v_lshl_add_u32 v15, v16, 3, v15")
    e("v_add_u32 v15, s33, v15")
    for nt in range(2):
        for t in range(2):
            b = 64 + (nt * 2 + t) * 4
            e(f"ds_read_b64_tr_b16 {vr(b,2)}, v15 offset:{t*16*968+nt*64}")
            e(f"ds_read_b64_tr_b16 {vr(b+2,2)}, v15 offset:{t*16*968+nt*64+4*968}")
    e("s_waitcnt lgkmcnt(0)")
    e("s_lshl_b32 s43, s30, 18")
    e("s_lshl_b32 s44, s2, 11")
    e("s_add_u32 s43, s43, s44")
    e(f"s_add_u32 s43, s43, {HH_OFF}")
    e(f"s_add_u32 s45, s43, {128*1024}")
    for nt in range(2):
        for t in range(2):
            b = 64 + (nt * 2 + t) * 4
            e(f"buffer_store_dwordx4 {vr(b,4)}, v1, s[24:27], s{43 if nt==0 else 45} offen offset:{t*1024}")
    e.stamp()
    e.dump(2, 24)
    e("s_endpgm")
    e.label("K3_END")
    e("s_endpgm")
    return e.text(), desc("k3_kernel", 128), f"; @launch kernel=k3_kernel grid=(64,1,1) block=(448,1,1) lds={STAT+2048}"


def kmlp(which):
    e = E()
    name = "k4_kernel" if which == 4 else "k5_kernel"
    L = "K4" if which == 4 else "K5"
    header(e, name)
    if which == 4:
        KS, NWG, NCB, pitch, wsize = 32, 200, 25, 3584, 2048 * 3584
        F_OFF, FSTEPS, natural = HH_OFF, 128, True
        woff, boff = 48, 56
    else:
        KS, NWG, NCB, pitch, wsize = 28, 224, 28, 4096, 1792 * 4096
        F_OFF, FSTEPS, natural = UF_OFF, 112, False
        woff, boff = 64, 72
    RING, DW, DF = 16, 12, 8
    e(f"s_cmp_ge_u32 s2, {NWG}")
    e(f"s_cbranch_scc1 {L}_END")
    e(f"s_load_dwordx2 s[6:7], s[0:1], {woff}")
    e(f"s_load_dwordx2 s[8:9], s[0:1], {boff}")
    e("s_load_dwordx2 s[10:11], s[0:1], 80")
    e("s_load_dwordx2 s[12:13], s[0:1], 96")
    e("v_lshrrev_b32 v1, 6, v0")
    e("v_and_b32 v2, 63, v0")
    e("v_readfirstlane_b32 s30, v1")
    e("s_and_b32 s33, s2, 7")
    e(f"s_mul_i32 s33, s33, {NCB}")
    e("s_lshr_b32 s34, s2, 3")
    e("s_add_u32 s34, s34, s33")
    if which == 4:
        e("s_cmp_ge_u32 s34, 196")
        e(f"s_cbranch_scc1 {L}_END")
    e("s_mov_b32 s33, 0x24924925")
    e("s_mul_hi_u32 s29, s34, s33")
    e("s_mul_i32 s33, s29, 7")
    e("s_sub_u32 s28, s34, s33")
    if "rot" in EXP:
        e("s_add_u32 s29, s29, 1")
        e(f"s_cmp_ge_u32 s29, {28 if which == 4 else 32}")
        e("s_cselect_b32 s29, 0, s29")
    e(f"s_movk_i32 s31, {pitch}")
    e("v_lshlrev_b32 v1, 4, v2")
    dma_voff(e, 2, 3, 4, 31)
    tr_addr(e, 2, 5, 6, 7, 8, natural)
    e("s_lshl_b32 s32, s30, 15")
    e("v_add_u32 v5, s32, v5")
    e("v_add_u32 v6, s32, v6")
    e("s_lshl_b32 s33, s29, 7")
    e("v_add_u32 v3, s33, v3")
    e("s_waitcnt lgkmcnt(0)")
    e.stamp()
    srd(e, 20, 6, 7, wsize)
    srd(e, 24, 12, 13, WS_SIZE)
    e(f"s_mul_i32 s34, s30, {KS*16*pitch}")
    e(f"s_mul_i32 s35, s28, {2*FSTEPS*1024}")
    e(f"s_mul_i32 s36, s30, {KS*1024}")
    e("s_add_u32 s35, s35, s36")
    e(f"s_add_u32 s35, s35, {F_OFF}")
    e(f"s_add_u32 s36, s35, {FSTEPS*1024}")
    e("s_lshr_b32 s41, s30, 1")
    e("s_and_b32 s42, s30, 1")
    e("v_lshrrev_b32 v10, 5, v2")
    if which == 4:
        srd(e, 16, 8, 9, 1792 * 2)
        e("s_lshl_b32 s43, s29, 6")
        e("s_lshl_b32 s44, s41, 5")
        e("s_add_u32 s43, s43, s44")
        e("s_lshl_b32 s44, s43, 1")
        e("v_lshlrev_b32 v11, 3, v10")
        for q in range(4):
            e.vmop(f"buffer_load_dwordx2 {vr(16+2*q,2)}, v11, s[16:19], s44 offen offset:{q*16}", "EP")
    else:
        srd(e, 16, 8, 9, 2048 * 2)
        srd(e, 44, 10, 11, 2048 * 896)
        e("s_lshl_b32 s43, s29, 6")
        e("s_lshl_b32 s48, s41, 5")
        e("s_add_u32 s43, s43, s48")
        e("v_and_b32 v11, 31, v2")
        e("v_add_u32 v11, s43, v11")
        e("v_lshlrev_b32 v12, 1, v11")
        e.vmop("buffer_load_ushort v13, v12, s[16:19], 0 offen", "EP")
        e("s_movk_i32 s49, 896")
        e("v_mul_lo_u32 v14, v11, s49")
        e("v_lshl_add_u32 v14, v10, 3, v14")
        e("s_lshl_b32 s48, s28, 7")
        e("s_lshl_b32 s49, s42, 6")
        e("s_add_u32 s48, s48, s49")
        e("v_add_u32 v14, s48, v14")
        e("s_lshl_b32 s50, s29, 1")
        e("s_add_u32 s50, s50, s41")
        e("s_mul_i32 s50, s50, 14")
        e("s_lshl_b32 s51, s28, 1")
        e("s_add_u32 s50, s50, s51")
        e("s_add_u32 s50, s50, s42")
        e("s_lshl_b32 s50, s50, 11")
        e(f"s_add_u32 s50, s50, {H_OFF}")
        e.vmop("buffer_load_dwordx4 v[16:19], v1, s[24:27], s50 offen", "EP")
        e.vmop("buffer_load_dwordx4 v[20:23], v1, s[24:27], s50 offen offset:1024", "EP")
    ACC = lambda a, b: 64 + (a * 2 + b) * 16
    FR = lambda k, b: 128 + ((k % DF) * 2 + b) * 4
    WF = lambda p, nt: 192 + (p * 2 + nt) * 4

    def wdma(k):
        slot = k % RING
        e(f"s_add_u32 s40, s32, {slot*2048}")
        e("s_mov_b32 m0, s40")
        e(f"s_add_u32 s41, s34, {k*16*pitch}")
        e.vmop("buffer_load_dwordx4 v3, s[20:23], s41 offen lds", f"W{k}")
        e(f"s_add_u32 s40, s32, {slot*2048+1024}")
        e("s_mov_b32 m0, s40")
        e(f"s_add_u32 s41, s34, {(k*16+8)*pitch}")
        e.vmop("buffer_load_dwordx4 v3, s[20:23], s41 offen lds", f"W{k}")

    def fld(k):
        e(f"s_add_u32 s42, s35, {k*1024}")
        e.vmop(f"buffer_load_dwordx4 {vr(FR(k,0),4)}, v1, s[24:27], s42 offen", f"F{k}")
        e(f"s_add_u32 s42, s36, {k*1024}")
        e.vmop(f"buffer_load_dwordx4 {vr(FR(k,1),4)}, v1, s[24:27], s42 offen", f"F{k}")

    def rd(k):
        p = k & 1
        slot = k % RING
        o2 = 512 if natural else 1024
        for nt in range(2):
            a = "v5" if nt == 0 else "v6"
            e(f"ds_read_b64_tr_b16 {vr(WF(p,nt),2)}, {a} offset:{slot*2048}")
            e(f"ds_read_b64_tr_b16 {vr(WF(p,nt)+2,2)}, {a} offset:{slot*2048+o2}")

    for j in range(-DW, 0):
        wdma(j + DW)
        if j + DF >= 0:
            fld(j + DF)
    e.stamp()
    e.vmwait("W0")
    e.stamp()
    rd(0)
    for k in range(KS):
        if k + DW < KS:
            wdma(k + DW)
        e.vmwait([f"W{k+1}", f"F{k}"] if k + 1 < KS else [f"F{k}"])
        e("s_waitcnt lgkmcnt(0)")
        if k + 1 < KS:
            rd(k + 1)
        p = k & 1
        for a in range(2):
            for b in range(2):
                c = "0" if k == 0 else vr(ACC(a, b), 16)
                if which == 4:
                    e(f"{MFMA} {vr(ACC(a,b),16)}, {vr(WF(p,a),4)}, {vr(FR(k,b),4)}, {c}")
                else:
                    e(f"{MFMA} {vr(ACC(a,b),16)}, {vr(FR(k,b),4)}, {vr(WF(p,a),4)}, {c}")
        if k + DF < KS:
            fld(k + DF)
    e("s_nop 7")
    e("s_nop 7")
    e.stamp()
    e("v_add_u32 v9, s32, v1")
    for t in range(4):
        for q in range(4):
            e(f"ds_write_b128 v9, {vr(64+t*16+q*4,4)} offset:{t*4096+q*1024}")
    e("s_waitcnt lgkmcnt(0)")
    e("s_barrier")
    e("s_lshl_b32 s40, s30, 12")
    e("v_add_u32 v9, s40, v1")
    e("v_add_u32 v7, 0x10000, v9")
    for src in range(4):
        for q in range(4):
            e(f"ds_read_b128 {vr(128+src*16+q*4,4)}, {'v9' if src < 2 else 'v7'} offset:{(src&1)*32768+q*1024}")
    e("s_waitcnt lgkmcnt(0)")
    for r in range(16):
        e(f"v_add_f32 v{128+r}, v{128+r}, v{144+r}")
        e(f"v_add_f32 v{160+r}, v{160+r}, v{176+r}")
    for r in range(16):
        e(f"v_add_f32 v{128+r}, v{128+r}, v{160+r}")
    e("s_lshr_b32 s41, s30, 1")
    e("s_and_b32 s42, s30, 1")
    e("v_lshrrev_b32 v10, 5, v2")
    if which == 4:
        e.vmwait("EP")
        for j in range(8):
            e(f"v_lshlrev_b32 v{32+2*j}, 16, v{16+j}")
            e(f"v_and_b32 v{33+2*j}, 0xffff0000, v{16+j}")
        for r in range(16):
            e(f"v_add_f32 v{128+r}, v{128+r}, v{32+r}")
        c1 = -2.0 * LOG2E * 0.7978845608028654
        c3 = c1 * 0.044715
        e(f"s_mov_b32 s45, {f2u(c3):#x}")
        e(f"s_mov_b32 s46, {f2u(c1):#x}")
        for r in range(16):
            e(f"v_mul_f32 v{32+r}, v{128+r}, v{128+r}")
        for r in range(16):
            e(f"v_mov_b32 v{48+r}, s46")
        for r in range(16):
            e(f"v_fma_f32 v{32+r}, v{32+r}, s45, v{48+r}")
        for r in range(16):
            e(f"v_mul_f32 v{32+r}, v{32+r}, v{128+r}")
        for r in range(16):
            e(f"v_exp_f32 v{32+r}, v{32+r}")
        for r in range(16):
            e(f"v_add_f32 v{32+r}, 1.0, v{32+r}")
        for r in range(16):
            e(f"v_rcp_f32 v{32+r}, v{32+r}")
        e("s_nop 0")
        for r in range(16):
            e(f"v_mul_f32 v{128+r}, v{128+r}, v{32+r}")
        for j in range(8):
            e(f"v_cvt_pk_bf16_f32 v{16+j}, v{128+2*j}, v{129+2*j}")
        e("s_lshl_b32 s43, s28, 1")
        e("s_add_u32 s43, s43, s42")
        e("s_mul_i32 s43, s43, 112")
        e("s_lshl_b32 s44, s29, 2")
        e("s_lshl_b32 s45, s41, 1")
        e("s_add_u32 s44, s44, s45")
        e("s_add_u32 s43, s43, s44")
        e("s_lshl_b32 s43, s43, 10")
        e(f"s_add_u32 s43, s43, {UF_OFF}")
        e("buffer_store_dwordx4 v[16:19], v1, s[24:27], s43 offen")
        e("buffer_store_dwordx4 v[20:23], v1, s[24:27], s43 offen offset:1024")
    else:
        e.vmwait("EP")
        e("v_lshlrev_b32 v13, 16, v13")
        for r in range(16):
            e(f"v_add_f32 v{128+r}, v{128+r}, v13")
        for j in range(8):
            e(f"v_cvt_pk_bf16_f32 v{24+j}, v{128+2*j}, v{129+2*j}")
        for j in range(8):
            e(f"v_lshlrev_b32 v{128+2*j}, 16, v{24+j}")
            e(f"v_and_b32 v{129+2*j}, 0xffff0000, v{24+j}")
            e(f"v_lshlrev_b32 v{32+2*j}, 16, v{16+j}")
            e(f"v_and_b32 v{33+2*j}, 0xffff0000, v{16+j}")
        for r in range(16):
            e(f"v_add_f32 v{128+r}, v{128+r}, v{32+r}")
        for j in range(8):
            e(f"v_cvt_pk_bf16_f32 v{24+j}, v{128+2*j}, v{129+2*j}")
        for q in range(4):
            e(f"buffer_store_dwordx2 {vr(24+2*q,2)}, v14, s[44:47], 0 offen offset:{q*16}")
    e.stamp()
    e.dump(which - 1, 24)
    e.label(f"{L}_END")
    e("s_endpgm")
    return e.text(), desc(name, 208), f"; @launch kernel={name} grid=({NWG},1,1) block=(256,1,1) lds=131072"


def build(which=(1, 2, 3, 4, 5)):
    gens = {1: k1, 2: k2, 3: k3, 4: lambda: kmlp(4), 5: lambda: kmlp(5)}
    ref = open(f"cdna_kernels/{NAME}.s.ref").read().splitlines()
    head = [l for l in ref if l.startswith(";") and "@launch" not in l and "Override" not in l and "grid=ceil" not in l]
    launches, bodies = [], []
    for w in which:
        t, d, l = gens[w]()
        launches.append(l)
        bodies.append(t + d)
    out = "\n".join(head) + "\n" + "\n".join(launches) + "\n"
    out += '.amdgcn_target "amdgcn-amd-amdhsa--gfx950"\n.text\n'
    out += "".join(bodies)
    return out


if __name__ == "__main__":
    s = build()
    open(f"cdna_kernels/{NAME}.s", "w").write(s)
    print("written", len(s), "bytes")
```
